```python
import torch

def _softmax(x, axis=-1):
    return torch.softmax(x, dim=axis)
def _gelu(x):
    return torch.nn.functional.gelu(x, approximate="tanh")
def _silu(x):
    return torch.nn.functional.silu(x)
def _sigmoid(x):
    return torch.sigmoid(x)
def _layernorm(x, axis=-1, eps=1e-5):
    m = x.mean(dim=axis, keepdim=True)
    v = x.var(dim=axis, keepdim=True, unbiased=False)
    return (x - m) / torch.sqrt(v + eps)
def _scatter_add(tgt, idx, src, axis=0):
    return tgt.clone().index_add_(axis, idx, src)
def _segment_sum(src, seg, n):
    out = torch.zeros((n,) + src.shape[1:], dtype=src.dtype)
    return out.index_add_(0, seg, src)
def _pad(x, pw):
    flat = tuple(v for pair in reversed(pw) for v in pair)
    return torch.nn.functional.pad(x, flat)

kernel_name = 'parallel_sum__sliding_block__mixer_channel_mlp__prompt'

def setup_inputs():

    _w = (lambda a: (lambda t: t.to(torch.bfloat16) if t.is_floating_point() else t)(torch.as_tensor(a)))
    def _A_setup():
        B, S, D = 1, 2048, 640
        return {
            "x": _w((lambda *s: torch.randn(*s, dtype=torch.bfloat16) * 0.05)(B, S, D)),
            "wqkv": _w((lambda *s: torch.randn(*s, dtype=torch.bfloat16) * 0.05)(D, 3 * D)),
            "wo": _w((lambda *s: torch.randn(*s, dtype=torch.bfloat16) * 0.05)(D, D)),
        }
    _A_in = _A_setup()

    def _B_setup():
        B, S, D, F = 1, 2048, 640, 1728
        return {
            "x": _w((lambda *s: torch.randn(*s, dtype=torch.bfloat16) * 0.05)(B, S, D)),
            "w1": _w((lambda *s: torch.randn(*s, dtype=torch.bfloat16) * 3.2)(D, F) * (D ** -0.5)),
            "b1": _w((lambda *s: torch.randn(*s, dtype=torch.bfloat16) * 1.6)(F)),
            "w2": _w((lambda *s: torch.randn(*s, dtype=torch.bfloat16) * 0.2)(F, D) * (F ** -0.5)),
            "b2": _w((lambda *s: torch.randn(*s, dtype=torch.bfloat16) * 0.4)(D)),
        }
    _B_in = _B_setup()

    return {
        "A_x": _A_in["x"],
        "A_wqkv": _A_in["wqkv"],
        "A_wo": _A_in["wo"],
        "B_x": _B_in["x"],
        "B_w1": _B_in["w1"],
        "B_b1": _B_in["b1"],
        "B_w2": _B_in["w2"],
        "B_b2": _B_in["b2"],
    }

def reference(A_x, A_wqkv, A_wo, B_x, B_w1, B_b1, B_w2, B_b2):
    def _A_ref(x, wqkv, wo):
        B, S, D = x.shape
        H = 32; Dh = D // H; W = 256
        qkv = (lambda x, *d: x.permute(*d))((x @ wqkv).reshape(B, S, 3, H, Dh), 2, 0, 3, 1, 4)
        q, k, v = qkv[0], qkv[1], qkv[2]
        scores = torch.einsum("bhqd,bhkd->bhqk", q, k) * (Dh ** -0.5)
        idx = torch.arange(S)
        mask = (idx[:, None] - idx[None, :] >= 0) & (idx[:, None] - idx[None, :] < W)
        scores = torch.where(mask[None, None], scores, -1e9)
        p = _softmax(scores, axis=-1)
        o = torch.einsum("bhqk,bhkd->bhqd", p, v)
        return (lambda x, *d: x.permute(*d))(o, 0, 2, 1, 3).reshape(B, S, D) @ wo

    def _B_ref(x, w1, b1, w2, b2):
        y = _layernorm(x, axis=-1)
        h = _gelu(torch.einsum("bsd,df->bsf", y, w1) + b1)
        return torch.einsum("bsf,fd->bsd", h, w2) + b2

    x = A_x
    xn = _layernorm(x, axis=-1)
    return x + _A_ref(xn, A_wqkv, A_wo) + _B_ref(xn, B_w1, B_b1, B_w2, B_b2)
```

```python
import re

TRANS = ("v_exp_f32", "v_log_f32", "v_rcp_f32", "v_rsq_f32", "v_sqrt_f32", "v_sin_f32", "v_cos_f32")

def regs_of(tok):
    tok = tok.strip()
    neg = tok.lstrip("-")
    if neg.startswith("abs(") and neg.endswith(")"):
        neg = neg[4:-1]
    if neg.startswith("|") and neg.endswith("|"):
        neg = neg[1:-1]
    m = re.fullmatch(r"([vas])(\d+)", neg)
    if m:
        return [(m.group(1), int(m.group(2)))]
    m = re.fullmatch(r"([vas])\[(\d+):(\d+)\]", neg)
    if m:
        return [(m.group(1), i) for i in range(int(m.group(2)), int(m.group(3)) + 1)]
    if neg == "vcc":
        return [("s", "vcc_lo"), ("s", "vcc_hi")]
    if neg in ("vcc_lo", "vcc_hi", "m0", "exec_lo", "exec_hi"):
        return [("s", neg)]
    if neg == "exec":
        return [("s", "exec_lo"), ("s", "exec_hi")]
    return []

class Ins:
    __slots__ = ("text", "op", "reads", "writes", "cls", "passes", "srcc", "dpp", "states", "wide_store", "lds_dma", "srcab")
    def __init__(self, text):
        self.text = text
        t = text.split(";")[0].strip()
        self.op = None
        self.reads, self.writes = [], []
        self.cls = "other"; self.passes = 0; self.srcc = []; self.srcab = []
        self.dpp = False; self.states = 1; self.wide_store = False; self.lds_dma = False
        if not t or t.endswith(":") or t.startswith("."):
            self.cls = "label"; self.states = 0
            return
        parts = t.split(None, 1)
        op = parts[0]; self.op = op
        rest = parts[1] if len(parts) > 1 else ""
        ops = [o.strip() for o in rest.split(",")] if rest else []
        mods = ""
        if ops:
            last = ops[-1].split(None, 1)
            ops[-1] = last[0]
            mods = last[1] if len(last) > 1 else ""
        R = lambda i: regs_of(ops[i]) if i < len(ops) else []
        base = op.replace("_e32", "").replace("_e64", "").replace("_dpp", "").replace("_sdwa", "")
        if op == "s_nop":
            self.cls = "nop"; self.states = int(ops[0], 0) + 1
        elif op.startswith("v_mfma"):
            self.cls = "mfma"
            self.passes = 8 if "32x32x16" in op else 4 if "16x16x32" in op else 16
            self.writes = R(0); self.srcab = R(1) + R(2); self.srcc = R(3)
            self.reads = self.srcab + self.srcc
        elif op.startswith("v_cmp"):
            self.cls = "valu"; self.writes = R(0); self.reads = R(1) + R(2)
        elif base in ("v_readfirstlane_b32", "v_readlane_b32"):
            self.cls = "readlane"; self.writes = R(0); self.reads = R(1) + R(2)
        elif base.startswith("v_permlane"):
            self.cls = "permlane"; self.writes = R(0) + R(1); self.reads = R(0) + R(1)
        elif op.startswith("v_"):
            self.cls = "trans" if base in TRANS else "valu"
            self.writes = R(0)
            k = 1
            if base in ("v_add_co_u32", "v_addc_co_u32", "v_sub_co_u32", "v_subb_co_u32"):
                self.writes += R(1); k = 2
            for i in range(k, len(ops)):
                self.reads += R(i)
            if base in ("v_fmac_f32", "v_dot2c_f32_bf16", "v_writelane_b32"):
                self.reads += R(0)
            if base == "v_cndmask_b32" and len(ops) == 3:
                self.reads += regs_of("vcc")
            if "row_" in mods or "quad_perm" in mods or "wave_" in mods or op.endswith("_dpp"):
                self.dpp = True
                self.reads += R(0)
        elif op.startswith("ds_"):
            self.cls = "ds"
            if op.startswith("ds_read") or op.startswith("ds_bpermute") or op.startswith("ds_swizzle") or op.startswith("ds_permute"):
                self.writes = R(0)
                for i in range(1, len(ops)): self.reads += R(i)
            else:
                for i in range(len(ops)): self.reads += R(i)
        elif op.startswith("buffer_") or op.startswith("global_"):
            self.cls = "vmem"
            islds = re.search(r"\blds\b", mods) is not None or "_lds_" in op
            if op.startswith("buffer_load") and not islds:
                self.writes = R(0)
                for i in range(1, len(ops)): self.reads += R(i)
            elif op.startswith("global_load") and not islds:
                self.writes = R(0)
                for i in range(1, len(ops)): self.reads += R(i)
            else:
                for i in range(len(ops)): self.reads += R(i)
                if islds:
                    self.lds_dma = True; self.reads += [("s", "m0")]
                if "store" in op and ("x4" in op or "x3" in op):
                    self.wide_store = True
        elif op.startswith("s_"):
            self.cls = "salu"
            if op.startswith("s_cmp") or op.startswith("s_cbranch") or op in ("s_branch", "s_barrier", "s_waitcnt", "s_endpgm", "s_sleep", "s_setprio", "s_bitcmp1_b32", "s_bitcmp0_b32"):
                for i in range(len(ops)): self.reads += R(i)
            else:
                self.writes = R(0)
                for i in range(1, len(ops)): self.reads += R(i)
                if "saveexec" in op:
                    self.writes += regs_of("exec")

class Prog:
    def __init__(self):
        self.ins = []
        self.vm = []
        self.lg = []
    def e(self, text):
        for line in text.split("\n"):
            line = line.strip()
            if line:
                self.ins.append(Ins(line))
    def vmem(self, text, tag=None):
        self.e(text); self.vm.append(tag)
    def lds(self, text, tag=None):
        self.e(text); self.lg.append(tag)
    def wait_vm(self, tag):
        idx = [i for i, t in enumerate(self.vm) if t == tag]
        if not idx:
            return
        n = len(self.vm) - 1 - idx[-1]
        self.vm = self.vm[idx[-1] + 1:]
        if n > 63:
            n = 63
            self.vm = self.vm[-63:]
        self.e(f"s_waitcnt vmcnt({n})")
    def wait_lg(self, tag):
        idx = [i for i, t in enumerate(self.lg) if t == tag]
        if not idx:
            return
        n = len(self.lg) - 1 - idx[-1]
        self.lg = self.lg[idx[-1] + 1:]
        if n > 15:
            n = 15
            self.lg = self.lg[-15:]
        self.e(f"s_waitcnt lgkmcnt({n})")
    def wait_all(self, vm=True, lg=True):
        w = []
        if vm: w.append("vmcnt(0)"); self.vm = []
        if lg: w.append("lgkmcnt(0)"); self.lg = []
        self.e("s_waitcnt " + " ".join(w))
    def label(self, name):
        self.e(name + ":")

    def finalize(self, verbose=False):
        out = []
        pos = 0
        last = {}
        def setp(r, kind, p, extra=None):
            last.setdefault(r, {})[kind] = (p, extra)
        def need(r, kind, dist_fn):
            d = last.get(r, {}).get(kind)
            if d is None: return 0
            p, extra = d
            req = dist_fn(extra)
            return max(0, req - (pos - p - 1))
        npad = 0
        for I in self.ins:
            if I.cls == "label":
                out.append(I); continue
            pad = 0
            isvalu = I.cls in ("valu", "trans", "readlane", "permlane")
            for r in I.reads:
                if r[0] in "va":
                    if I.cls == "mfma":
                        pad = max(pad, need(r, "valu_w", lambda x: 2))
                    if I.cls == "permlane" or I.dpp:
                        pad = max(pad, need(r, "valu_w", lambda x: 2))
                    if I.cls == "readlane":
                        pad = max(pad, need(r, "valu_w", lambda x: 1))
                    if isvalu and I.cls != "trans":
                        pad = max(pad, need(r, "trans_w", lambda x: 1))
                    if I.cls in ("ds", "vmem"):
                        pad = max(pad, need(r, "trans_w", lambda x: 1))
                    if isvalu or I.cls in ("ds", "vmem"):
                        pad = max(pad, need(r, "mfma_w", lambda x: {4: 8, 8: 12, 16: 20}[x[0]]))
                else:
                    if isvalu:
                        pad = max(pad, need(r, "valu_sw", lambda x: 4 if I.cls == "readlane" else 2))
                    if I.cls == "vmem":
                        pad = max(pad, need(r, "valu_sw", lambda x: 5))
                    if I.cls == "salu":
                        pad = max(pad, need(r, "valu_sw", lambda x: 2))
                    if I.lds_dma and r[1] == "m0":
                        pad = max(pad, need(r, "salu_w", lambda x: 1))
            if I.cls == "mfma":
                for r in I.srcab:
                    pad = max(pad, need(r, "mfma_w", lambda x: {4: 8, 8: 12, 16: 20}[x[0]]))
                for r in I.srcc:
                    def f(x):
                        same = (x[1] == tuple(I.srcc)) and x[0] == I.passes
                        return 0 if same else {4: 6, 8: 10, 16: 18}[x[0]]
                    pad = max(pad, need(r, "mfma_w", f))
                for r in I.writes:
                    if r not in I.srcc:
                        pad = max(pad, need(r, "mfma_w", lambda x: {4: 6, 8: 10, 16: 18}[x[0]]))
            for r in I.writes:
                if r[0] in "va":
                    if isvalu or I.cls in ("ds", "vmem"):
                        pad = max(pad, need(r, "mfma_w", lambda x: {4: 8, 8: 12, 16: 20}[x[0]]))
                        pad = max(pad, need(r, "mfma_c", lambda x: {4: 3, 8: 7, 16: 15}[x]))
                        pad = max(pad, need(r, "wstore", lambda x: 2))
            while pad > 0:
                k = min(pad, 16)
                out.append(Ins(f"s_nop {k-1}")); pos += k; pad -= k; npad += k
            out.append(I)
            for r in I.writes:
                d = last.setdefault(r, {})
                if r[0] in "va":
                    for k in ("valu_w", "trans_w", "mfma_w"):
                        d.pop(k, None)
                    if isvalu:
                        setp(r, "valu_w", pos)
                        if I.cls == "trans": setp(r, "trans_w", pos)
                    elif I.cls == "mfma":
                        setp(r, "mfma_w", pos, (I.passes, tuple(I.writes)))
                else:
                    d.pop("valu_sw", None); d.pop("salu_w", None)
                    if isvalu: setp(r, "valu_sw", pos)
                    elif I.cls == "salu": setp(r, "salu_w", pos)
            if I.cls == "mfma":
                for r in I.srcc: setp(r, "mfma_c", pos, I.passes)
            if I.wide_store:
                ops = I.text.split(None, 1)[1].split(",")
                data = regs_of(ops[0]) if I.op.startswith("buffer") else regs_of(ops[1])
                for r in data: setp(r, "wstore", pos - 0)
            pos += I.states
        self.npad = npad
        return "\n".join(("" if i.cls == "label" else "  ") + i.text for i in out) + "\n"

def vr(base, n=1, f="v"):
    return f"{f}{base}" if n == 1 else f"{f}[{base}:{base+n-1}]"
def ar(base, n=1):
    return vr(base, n, "a")
def sr(base, n=1):
    return vr(base, n, "s")
```

```python
import sys, math, copy
from asmlib import *

NAME = "parallel_sum__sliding_block__mixer_channel_mlp__prompt"
BIG = 0x40000000
XN = 0
CV = 0x280000
QK = 0x290000
VT = 0x790000
HH = 0xA10000
OO = 0x10D0000
W2T = 0x1350000
FLG = 0x1640000
L_RING = 0
L_BIAS = 131072
L_STAT = 131584
L_TR = 132096
LDS_BYTES = 163840
S_WAVE = 3
SRD_X, SRD_WQKV, SRD_W1, SRD_WS, SRD_OUT, SRD_WT, SRD_B1, SRD_B2 = 4, 8, 12, 16, 20, 24, 28, 32
S_WO, S_W2 = 36, 38
S_XCD, S_U = 40, 41
ST = 44
SE = 64

def f2u(x):
    import struct
    return struct.unpack("<I", struct.pack("<f", x))[0]

def prologue(p, kname):
    p.e(f"""
    s_cmp_ge_u32 s2, 256
    s_cbranch_scc1 L_end_{kname}
    s_load_dwordx16 s[64:79], s[0:1], 0
    s_load_dwordx4 s[80:83], s[0:1], 64
    s_load_dwordx2 s[84:85], s[0:1], 80
    v_lshrrev_b32 v1, 6, v0
    v_and_b32 v0, 63, v0
    v_readfirstlane_b32 s{S_WAVE}, v1
    s_and_b32 s{S_XCD}, s2, 7
    s_lshr_b32 s{S_U}, s2, 3
    s_waitcnt lgkmcnt(0)
    """)
    def srd(d, src, n):
        p.e(f"s_mov_b32 s{d}, s{src}\ns_mov_b32 s{d+1}, s{src+1}\ns_mov_b32 s{d+2}, {n}\ns_mov_b32 s{d+3}, 0x00020000")
    srd(SRD_X, 64, 2048 * 1280)
    srd(SRD_WS, 84, 0x10000000)
    srd(SRD_WQKV, 66, 640 * 3840)
    srd(SRD_W1, 72, 640 * 3456)
    srd(SRD_B1, 74, 3456)
    srd(SRD_B2, 78, 1280)
    srd(SRD_OUT, 80, 2048 * 1280)
    p.e(f"s_mov_b32 s{S_WO}, s68\ns_mov_b32 s{S_WO+1}, s69\ns_mov_b32 s{S_W2}, s76\ns_mov_b32 s{S_W2+1}, s77")

def rbf16(p, d, s):
    p.e(f"v_cvt_pk_bf16_f32 v{d}, v{s}, v{s}\nv_and_b32 v{d}, 0xffff0000, v{d}")

def phase_p0(p, sc):
    t = ST
    vrow, vcg, voff, vst = 2, 3, 40, 41
    p.e(f"""
    v_and_b32 v{vrow}, 7, v0
    v_lshrrev_b32 v{vcg}, 3, v0
    s_lshl_b32 s{t}, s2, 3
    v_add_u32 v{voff}, s{t}, v{vrow}
    v_mul_u32_u24 v{voff}, 1280, v{voff}
    v_lshl_add_u32 v{voff}, v{vcg}, 4, v{voff}
    s_lshl_b32 s{t+1}, s{S_WAVE}, 7
    s_add_u32 s{t+2}, s{t+1}, 1024
    s_cmp_lt_u32 s{S_WAVE}, 2
    s_cselect_b32 s{t+2}, s{t+2}, {BIG}
    """)
    p.vmem(f"buffer_load_dwordx4 v[4:7], v{voff}, s[{SRD_X}:{SRD_X+3}], s{t+1} offen", "x0")
    p.vmem(f"buffer_load_dwordx4 v[8:11], v{voff}, s[{SRD_X}:{SRD_X+3}], s{t+1} offen offset:512", "x1")
    p.vmem(f"buffer_load_dwordx4 v[12:15], v{voff}, s[{SRD_X}:{SRD_X+3}], s{t+2} offen", "x2")
    return t, vrow, vcg

def phase_p0b(p, sc, t, vrow, vcg):
    vst = 41
    p.e(f"""
    v_lshlrev_b32 v{vst}, 9, v{vcg}
    v_lshl_add_u32 v{vst}, v{vrow}, 4, v{vst}
    s_lshr_b32 s{t+3}, s2, 2
    s_mul_i32 s{t+3}, s{t+3}, 40960
    s_and_b32 s{t+4}, s2, 3
    s_lshl_b32 s{t+4}, s{t+4}, 7
    s_add_u32 s{t+3}, s{t+3}, s{t+4}
    s_lshl_b32 s{t+4}, s{S_WAVE}, 12
    s_add_u32 s{t+3}, s{t+3}, s{t+4}
    s_add_u32 s{t+3}, s{t+3}, {XN}
    s_add_u32 s{t+4}, s{t+3}, 16384
    s_add_u32 s{t+5}, s{t+3}, 32768
    s_cmp_lt_u32 s{S_WAVE}, 2
    s_cselect_b32 s{t+5}, s{t+5}, {BIG}
    """)
    vs, vq = 42, 43
    for i in range(3):
        p.wait_vm(f"x{i}")
        for d in range(4):
            src = 4 + 4 * i + d
            e = 16 + 8 * i + 2 * d
            p.e(f"v_lshlrev_b32 v{e}, 16, v{src}\nv_and_b32 v{e+1}, 0xffff0000, v{src}")
        for e in range(16 + 8 * i, 24 + 8 * i):
            if e == 16:
                p.e(f"v_mov_b32 v{vs}, v{e}\nv_mul_f32 v{vq}, v{e}, v{e}")
            else:
                p.e(f"v_add_f32 v{vs}, v{vs}, v{e}\nv_fmac_f32 v{vq}, v{e}, v{e}")
    p.e(f"v_add_f32_dpp v{vs}, v{vs}, v{vs} row_ror:8 row_mask:0xf bank_mask:0xf")
    p.e(f"v_add_f32_dpp v{vq}, v{vq}, v{vq} row_ror:8 row_mask:0xf bank_mask:0xf")
    for sw in ("v_permlane16_swap_b32", "v_permlane32_swap_b32"):
        p.e(f"v_mov_b32 v44, v{vs}\nv_mov_b32 v45, v{vq}")
        p.e(f"{sw} v44, v{vs}\n{sw} v45, v{vq}")
        p.e(f"v_add_f32 v{vs}, v44, v{vs}\nv_add_f32 v{vq}, v45, v{vq}")
    p.e(f"""
    v_lshlrev_b32 v46, 3, v{vrow}
    v_add_u32 v46, {L_STAT}, v46
    s_lshl_b32 s{t+6}, s{S_WAVE}, 6
    v_add_u32 v47, s{t+6}, v46
    """)
    p.lds(f"ds_write_b64 v47, v[{vs}:{vq}]", "stw")
    p.wait_lg("stw")
    p.e("s_barrier")
    p.lds(f"ds_read_b64 v[48:49], v46", "st")
    p.lds(f"ds_read_b64 v[50:51], v46 offset:64", "st")
    p.lds(f"ds_read_b64 v[52:53], v46 offset:128", "st")
    p.lds(f"ds_read_b64 v[54:55], v46 offset:192", "st")
    p.wait_lg("st")
    p.e(f"""
    v_add_f32 v48, v48, v50
    v_add_f32 v49, v49, v51
    v_add_f32 v52, v52, v54
    v_add_f32 v53, v53, v55
    v_add_f32 v48, v48, v52
    v_add_f32 v49, v49, v53
    v_mul_f32 v48, {f2u(1/640):#x}, v48
    v_mul_f32 v49, {f2u(1/640):#x}, v49
    v_fma_f32 v49, -v48, v48, v49
    v_max_f32 v49, 0, v49
    """)
    rbf16(p, 50, 49)
    p.e(f"v_add_f32 v50, {f2u(1e-5):#x}, v50")
    rbf16(p, 50, 50)
    p.e("v_sqrt_f32 v50, v50")
    rbf16(p, 50, 50)
    p.e("v_rcp_f32 v50, v50")
    p.e("v_mul_f32 v51, v48, v50")
    p.e("v_mul_f32 v52, v49, v50\nv_mul_f32 v52, v52, v50")
    for i in range(3):
        for e in range(16 + 8 * i, 24 + 8 * i):
            p.e(f"v_fma_f32 v{e}, v{e}, v50, -v51")
        for d in range(4):
            e = 16 + 8 * i + 2 * d
            p.e(f"v_cvt_pk_bf16_f32 v{4+4*i+d}, v{e}, v{e+1}")
        p.vmem(f"buffer_store_dwordx4 v[{4+4*i}:{7+4*i}], v{vst}, s[{SRD_WS}:{SRD_WS+3}], s{t+3+i} offen {sc}", "xnst")
    rbf16(p, 52, 52)
    p.e(f"v_add_f32 v52, {f2u(1e-5):#x}, v52")
    rbf16(p, 52, 52)
    p.e("v_sqrt_f32 v52, v52")
    rbf16(p, 52, 52)
    p.e("v_rcp_f32 v52, v52")
    p.e(f"""
    v_lshlrev_b32 v53, 2, v{vrow}
    v_cmp_lt_u32 vcc, 7, v0
    v_mov_b32 v54, {BIG}
    v_cndmask_b32 v53, v53, v54, vcc
    s_lshl_b32 s{t+6}, s2, 5
    s_add_u32 s{t+6}, s{t+6}, {CV}
    s_cmp_eq_u32 s{S_WAVE}, 0
    s_cselect_b32 s{t+6}, s{t+6}, {BIG}
    """)
    p.vmem(f"buffer_store_dword v52, v53, s[{SRD_WS}:{SRD_WS+3}], s{t+6} offen {sc}", "xnst")

def phase_tr_issue(p):
    t = ST + 8
    p.e(f"""
    s_mul_i32 s{t}, s2, 3
    s_add_u32 s{t}, s{t}, s{S_WAVE}
    s_cmp_lt_u32 s{S_WAVE}, 3
    s_cselect_b32 s{t}, s{t}, 1000
    s_mul_i32 s{t+1}, s{t}, 6554
    s_lshr_b32 s{t+1}, s{t+1}, 16
    s_mul_i32 s{t+2}, s{t+1}, 10
    s_sub_u32 s{t+2}, s{t}, s{t+2}
    s_cmp_lt_u32 s{t+1}, 54
    s_cselect_b32 s{SRD_WT}, s{S_W2}, s{S_WO}
    s_cselect_b32 s{SRD_WT+1}, s{S_W2+1}, s{S_WO+1}
    s_mov_b32 s{SRD_WT+2}, {640*1280}
    s_cmov_b32 s{SRD_WT+2}, {1728*1280}
    s_mov_b32 s{SRD_WT+3}, 0x00020000
    s_cselect_b32 s{t+3}, 0, 54
    s_sub_u32 s{t+3}, s{t+1}, s{t+3}
    s_mul_i32 s{t+3}, s{t+3}, {32*1280}
    s_lshl_b32 s{t+4}, s{t+2}, 7
    s_add_u32 s{t+3}, s{t+3}, s{t+4}
    s_cmp_lt_u32 s{t}, 740
    s_cselect_b32 s{t+3}, s{t+3}, {BIG}
    v_lshrrev_b32 v56, 3, v0
    v_mul_u32_u24 v56, 1280, v56
    v_and_b32 v57, 7, v0
    v_lshl_add_u32 v56, v57, 4, v56
    s_lshl_b32 s{t+4}, s{S_WAVE}, 12
    s_add_u32 s{t+4}, s{t+4}, {L_TR}
    """)
    for q in range(4):
        p.e(f"s_add_u32 m0, s{t+4}, {q*1024}\ns_add_u32 s{t+5}, s{t+3}, {q*8*1280}")
        p.vmem(f"buffer_load_dwordx4 v56, s[{SRD_WT}:{SRD_WT+3}], s{t+5} offen lds", "trd")

def phase_tr_finish(p, sc):
    t = ST + 8
    p.e(f"""
    v_lshrrev_b32 v56, 4, v0
    v_lshlrev_b32 v56, 10, v56
    v_bfe_u32 v57, v0, 2, 2
    v_lshl_add_u32 v56, v57, 7, v56
    v_and_b32 v57, 3, v0
    v_lshl_add_u32 v56, v57, 3, v56
    v_add_u32 v56, s{t+4}, v56
    v_lshlrev_b32 v57, 4, v0
    """)
    p.wait_vm("trd")
    for ct in range(4):
        p.lds(f"ds_read_b64_tr_b16 v[{60+4*ct}:{61+4*ct}], v56 offset:{ct*32}", f"trr{ct}")
        p.lds(f"ds_read_b64_tr_b16 v[{62+4*ct}:{63+4*ct}], v56 offset:{ct*32+512}", f"trr{ct}")
    for ct in range(4):
        p.e(f"""
        s_lshl_b32 s{t+5}, s{t+2}, 2
        s_add_u32 s{t+5}, s{t+5}, {ct}
        s_mul_i32 s{t+6}, s{t+5}, 13108
        s_lshr_b32 s{t+6}, s{t+6}, 16
        s_mul_i32 s{t+7}, s{t+6}, 5
        s_sub_u32 s{t+5}, s{t+5}, s{t+7}
        s_mul_i32 s{t+6}, s{t+6}, 74
        s_add_u32 s{t+6}, s{t+6}, s{t+1}
        s_mul_i32 s{t+6}, s{t+6}, 5
        s_add_u32 s{t+6}, s{t+6}, s{t+5}
        s_lshl_b32 s{t+6}, s{t+6}, 10
        s_add_u32 s{t+6}, s{t+6}, {W2T}
        s_cmp_lt_u32 s{t}, 740
        s_cselect_b32 s{t+6}, s{t+6}, {BIG}
        """)
        p.wait_lg(f"trr{ct}")
        p.vmem(f"buffer_store_dwordx4 v[{60+4*ct}:{63+4*ct}], v57, s[{SRD_WS}:{SRD_WS+3}], s{t+6} offen {sc}", "trst")

A_X = 0
V_ACC1 = 128
V_ACC2 = 192
V_WF = 224
V_T1, V_T1H, V_T2, V_T2H = 100, 101, 102, 103
V_DW1, V_DW2, V_LIN, V_EOFF, V_C, V_BADDR, V_K1, V_K2 = 104, 105, 106, 107, 108, 109, 113, 114
V_BIAS = 64
V_TMP = 80
S_MB, S_NB, S_RT = SE, SE + 1, SE + 2
S_W1B, S_P0B, S_P1B, S_WOFF = SE + 3, SE + 4, SE + 5, SE + 6
S_E = SE + 8
S_H0, S_H1, S_SCALE, S_XB, S_M0W = SE + 16, SE + 17, SE + 18, SE + 19, SE + 20
NWF, LA = 8, 4

def p1_setup(p):
    t = ST
    p.e(f"""
    s_and_b32 s{S_MB}, s{S_XCD}, 1
    s_lshl_b32 s{S_MB}, s{S_MB}, 3
    s_and_b32 s{t}, s{S_U}, 7
    s_add_u32 s{S_MB}, s{S_MB}, s{t}
    s_lshr_b32 s{S_NB}, s{S_XCD}, 1
    s_lshl_b32 s{S_NB}, s{S_NB}, 2
    s_lshr_b32 s{t}, s{S_U}, 3
    s_add_u32 s{S_NB}, s{S_NB}, s{t}
    s_lshl_b32 s{S_RT}, s{S_MB}, 2
    s_add_u32 s{S_RT}, s{S_RT}, s{S_WAVE}
    s_lshl_b32 s{t}, s{S_NB}, 8
    s_mul_i32 s{t+1}, s{S_WAVE}, {16*3840}
    s_add_u32 s{t}, s{t}, s{t+1}
    s_cmp_lt_u32 s{S_NB}, 15
    s_cselect_b32 s{S_W1B}, s{t}, {BIG}
    s_lshl_b32 s{t}, s{S_NB}, 8
    s_mul_i32 s{t+1}, s{S_WAVE}, {32*3456}
    s_add_u32 s{t}, s{t}, s{t+1}
    s_cmp_lt_u32 s{S_NB}, 14
    s_cselect_b32 s{S_P0B}, s{t}, {BIG}
    s_add_u32 s{t}, s{t}, 128
    s_cmp_lt_u32 s{S_NB}, 13
    s_cselect_b32 s{S_P1B}, s{t}, {BIG}
    s_lshl_b32 s{S_M0W}, s{S_WAVE}, 12
    v_bfe_u32 v110, v0, 2, 2
    v_and_b32 v111, 3, v0
    v_lshrrev_b32 v112, 4, v0
    v_mul_u32_u24 v{V_DW1}, 3840, v110
    v_lshl_add_u32 v{V_DW1}, v112, 6, v{V_DW1}
    v_lshl_add_u32 v{V_DW1}, v111, 4, v{V_DW1}
    v_lshrrev_b32 v{V_DW2}, 5, v0
    v_lshl_add_u32 v{V_DW2}, v{V_DW2}, 2, v110
    v_mul_u32_u24 v{V_DW2}, 3456, v{V_DW2}
    v_and_b32 v112, 1, v112
    v_lshl_add_u32 v{V_DW2}, v112, 6, v{V_DW2}
    v_lshl_add_u32 v{V_DW2}, v111, 4, v{V_DW2}
    v_lshlrev_b32 v{V_LIN}, 4, v0
    """)

def p1_dma(p, sl):
    slot = sl % 8
    for q in range(4):
        if sl < 10:
            p.e(f"s_add_u32 m0, s{S_M0W}, {slot*16384 + q*1024}\ns_add_u32 s{S_WOFF}, s{S_W1B}, {(64*sl + 4*q)*3840}")
            p.vmem(f"buffer_load_dwordx4 v{V_DW1}, s[{SRD_WQKV}:{SRD_WQKV+3}], s{S_WOFF} offen lds", f"W{sl}")
        else:
            j = (sl - 10) % 5
            b = S_P0B if sl < 15 else S_P1B
            p.e(f"s_add_u32 m0, s{S_M0W}, {slot*16384 + q*1024}\ns_add_u32 s{S_WOFF}, s{b}, {(128*j + 8*q)*3456}")
            p.vmem(f"buffer_load_dwordx4 v{V_DW2}, s[{SRD_W1}:{SRD_W1+3}], s{S_WOFF} offen lds", f"W{sl}")

def p1_setup2(p):
    t = ST
    p.e(f"""
    v_lshlrev_b32 v115, 6, v110
    v_lshl_add_u32 v115, v112, 5, v115
    v_lshrrev_b32 v116, 1, v111
    v_and_b32 v117, 1, v111
    v_lshl_add_u32 v116, v117, 1, v116
    v_lshl_add_u32 v117, v116, 3, v115
    v_lshl_add_u32 v116, v111, 3, v115
    v_lshrrev_b32 v115, 5, v0
    v_lshl_add_u32 v{V_T2}, v115, 10, v117
    v_add_u32 v{V_T2H}, 0x10000, v{V_T2}
    s_cmp_lt_u32 s{S_NB}, 10
    s_cselect_b64 vcc, -1, 0
    v_cndmask_b32 v116, v116, v117, vcc
    v_lshl_add_u32 v{V_T1}, v115, 11, v116
    v_add_u32 v{V_T1H}, 0x10000, v{V_T1}
    v_and_b32 v116, 31, v0
    v_lshlrev_b32 v117, 5, v116
    v_lshl_add_u32 v117, v115, 4, v117
    v_cndmask_b32 v{V_EOFF}, v117, v{V_LIN}, vcc
    s_mul_i32 s{t}, s{S_RT}, 160
    s_lshl_b32 s{t+1}, s{S_NB}, 4
    s_add_u32 s{t}, s{t}, s{t+1}
    s_lshl_b32 s{t}, s{t}, 9
    s_add_u32 s{t}, s{t}, {QK}
    s_mul_i32 s{t+1}, s{S_RT}, 40960
    s_sub_u32 s{t+2}, s{S_NB}, 10
    s_lshl_b32 s{t+2}, s{t+2}, 12
    s_add_u32 s{t+1}, s{t+1}, s{t+2}
    s_add_u32 s{t+1}, s{t+1}, {VT}
    s_cmp_lt_u32 s{S_NB}, 10
    s_cselect_b32 s{t}, s{t}, s{t+1}
    s_mov_b32 s{t+1}, 20480
    s_cmov_b32 s{t+1}, 1024
    s_mov_b32 s{t+2}, 1024
    s_cmov_b32 s{t+2}, 2048
    s_cmp_lt_u32 s{S_NB}, 15
    s_cselect_b32 s{S_E}, s{t}, {BIG}
    s_add_u32 s{S_E+1}, s{S_E}, s{t+1}
    s_add_u32 s{S_E+2}, s{S_E}, s{t+2}
    s_add_u32 s{S_E+3}, s{S_E+1}, s{t+2}
    s_add_u32 s{S_E+4}, s{S_E+2}, s{t+2}
    s_add_u32 s{S_E+5}, s{S_E+3}, s{t+2}
    s_add_u32 s{S_E+6}, s{S_E+4}, s{t+2}
    s_add_u32 s{S_E+7}, s{S_E+5}, s{t+2}
    s_cmp_lt_u32 s{S_NB}, 5
    s_cselect_b32 s{S_SCALE}, {f2u(20**-0.5 * math.log2(math.e)):#x}, 1.0
    s_mul_i32 s{t}, s{S_RT}, 216
    s_lshl_b32 s{t+1}, s{S_NB}, 4
    s_add_u32 s{t}, s{t}, s{t+1}
    s_lshl_b32 s{t}, s{t}, 9
    s_add_u32 s{t}, s{t}, {HH}
    s_cmp_lt_u32 s{S_NB}, 14
    s_cselect_b32 s{S_H0}, s{t}, {BIG}
    s_add_u32 s{t}, s{t}, 4096
    s_cmp_lt_u32 s{S_NB}, 13
    s_cselect_b32 s{S_H1}, s{t}, {BIG}
    s_mul_i32 s{S_XB}, s{S_RT}, 40960
    s_add_u32 s{S_XB}, s{S_XB}, {XN}
    v_mov_b32 v{V_K1}, {f2u(-2*0.7978845608028654*math.log2(math.e)*0.044715):#x}
    v_mov_b32 v{V_K2}, {f2u(-2*0.7978845608028654*math.log2(math.e)):#x}
    v_lshlrev_b32 v{V_BADDR}, 5, v115
    s_and_b32 s{t}, s{S_WAVE}, 1
    s_lshl_b32 s{t}, s{t}, 6
    v_add_u32 v116, s{t}, v0
    v_lshlrev_b32 v117, 1, v116
    s_lshl_b32 s{t+1}, s{S_NB}, 8
    """)
    p.vmem(f"buffer_load_ushort v118, v117, s[{SRD_B1}:{SRD_B1+3}], s{t+1} offen", "b1")
    p.e(f"v_lshlrev_b32 v116, 2, v116")
    p.wait_vm("b1")
    p.e("v_lshlrev_b32 v118, 16, v118")
    p.lds(f"ds_write_b32 v116, v118 offset:{L_BIAS - 65536}" if False else f"v_add_u32 v116, {L_BIAS}, v116\nds_write_b32 v116, v118", "bw")
    p.e(f"v_add_u32 v{V_BADDR}, {L_BIAS}, v{V_BADDR}")

def p1_xloads(p, sc):
    t = ST
    p.e(f"v_and_b32 v116, 31, v0\nv_lshlrev_b32 v116, 2, v116\ns_lshl_b32 s{t}, s{S_RT}, 7\ns_add_u32 s{t}, s{t}, {CV}")
    for s in range(40):
        if s % 4 == 0:
            p.e(f"s_add_u32 s{t+1}, s{S_XB}, {(s//4)*4096}")
        p.vmem(f"buffer_load_dwordx4 a[{A_X+4*s}:{A_X+4*s+3}], v{V_LIN}, s[{SRD_WS}:{SRD_WS+3}], s{t+1} offen offset:{(s%4)*1024} {sc}", f"X{s}")
    p.vmem(f"buffer_load_dword v{V_C}, v116, s[{SRD_WS}:{SRD_WS+3}], s{t} offen {sc}", "cload")

def wf(i):
    b = V_WF + 4 * (i % NWF)
    return b

def p1_reads(i):
    b = wf(i)
    if i < 160:
        s, tile = divmod(i, 4)
        sl = s // 4
        off = (sl % 8) * 16384 + (s % 4) * 4096 + tile * 256
        d2 = 1024
        lo, hi = V_T1, V_T1H
    else:
        tau, s = divmod(i - 160, 40)
        sl = 10 + 5 * (tau // 2) + s // 8
        off = (sl % 8) * 16384 + (s % 8) * 2048 + (tau % 2) * 256
        d2 = 512
        lo, hi = V_T2, V_T2H
    base = lo
    if off >= 65536:
        base = hi; off -= 65536
    return [f"ds_read_b64_tr_b16 v[{b}:{b+1}], v{base} offset:{off}",
            f"ds_read_b64_tr_b16 v[{b+2}:{b+3}], v{base} offset:{off+d2}"]

def p1_mfma(i, vtype):
    b = wf(i)
    if i < 160:
        s, tile = divmod(i, 4)
        acc = V_ACC1 + 16 * tile
    else:
        tau, s = divmod(i - 160, 40)
        acc = V_ACC2 + 16 * (tau % 2)
        vtype = False
    x = f"a[{A_X+4*s}:{A_X+4*s+3}]"
    w = f"v[{b}:{b+3}]"
    c = "0" if s == 0 else f"v[{acc}:{acc+15}]"
    if vtype:
        return f"v_mfma_f32_32x32x16_bf16 v[{acc}:{acc+15}], {x}, {w}, {c}"
    return f"v_mfma_f32_32x32x16_bf16 v[{acc}:{acc+15}], {w}, {x}, {c}"

def qkv_epilogue(sc):
    F = []
    for tile in range(4):
        acc = V_ACC1 + 16 * tile
        for u in range(2):
            tb = V_TMP + 4 * ((2 * tile + u) % 2)
            for e in range(4):
                r = acc + 8 * u + 2 * e
                F.append((1, lambda p, r=r: p.e(f"v_mul_f32 v{r}, s{S_SCALE}, v{r}")))
                F.append((1, lambda p, r=r: p.e(f"v_mul_f32 v{r+1}, s{S_SCALE}, v{r+1}")))
                F.append((1, lambda p, r=r, d=tb+e: p.e(f"v_cvt_pk_bf16_f32 v{d}, v{r}, v{r+1}")))
            F.append((1, lambda p, tb=tb, k=2*tile+u: p.vmem(f"buffer_store_dwordx4 v[{tb}:{tb+3}], v{V_EOFF}, s[{SRD_WS}:{SRD_WS+3}], s{S_E+k} offen {sc}", "qkvst")))
    return F

def gelu_epilogue(tau, sc):
    F = []
    acc = V_ACC2 + 16 * (tau % 2)
    for q in range(4):
        off = (32 * tau + 16 * (q >> 1) + 4 * (q & 1)) * 4
        F.append((1, lambda p, q=q, off=off: p.lds(f"ds_read_b128 v[{V_BIAS+4*q}:{V_BIAS+4*q+3}], v{V_BADDR} offset:{off}", f"bias{tau}_{q}")))
    for u in range(2):
        pk = V_TMP + 8 + 4 * u
        for e in range(4):
            r0 = acc + 8 * u + 2 * e
            b0 = V_BIAS + 8 * u + 2 * e
            t0, t1 = V_TMP + 16, V_TMP + 17
            if e % 2 == 0:
                F.append((0, lambda p, q=2*u+e//2: p.wait_lg(f"bias{tau}_{q}")))
            seq = [
                f"v_fma_f32 v{r0}, v{r0}, v{V_C}, v{b0}", f"v_fma_f32 v{r0+1}, v{r0+1}, v{V_C}, v{b0+1}",
                f"v_mul_f32 v{t0}, v{r0}, v{r0}", f"v_mul_f32 v{t1}, v{r0+1}, v{r0+1}",
                f"v_fma_f32 v{t0}, v{t0}, v{V_K1}, v{V_K2}", f"v_fma_f32 v{t1}, v{t1}, v{V_K1}, v{V_K2}",
                f"v_mul_f32 v{t0}, v{t0}, v{r0}", f"v_mul_f32 v{t1}, v{t1}, v{r0+1}",
                f"v_exp_f32 v{t0}, v{t0}", f"v_exp_f32 v{t1}, v{t1}",
                f"v_add_f32 v{t0}, 1.0, v{t0}", f"v_add_f32 v{t1}, 1.0, v{t1}",
                f"v_rcp_f32 v{t0}, v{t0}", f"v_rcp_f32 v{t1}, v{t1}",
                f"v_mul_f32 v{t0}, v{t0}, v{r0}", f"v_mul_f32 v{t1}, v{t1}, v{r0+1}",
                f"v_cvt_pk_bf16_f32 v{pk+e}, v{t0}, v{t1}"]
            for s in seq:
                w = 2 if s.split()[0] in TRANS else 1
                F.append((w, lambda p, s=s: p.e(s)))
        sb = S_H0 if tau < 2 else S_H1
        F.append((1, lambda p, pk=pk, sb=sb, off=(tau % 2) * 2048 + u * 1024:
                  p.vmem(f"buffer_store_dwordx4 v[{pk}:{pk+3}], v{V_LIN}, s[{SRD_WS}:{SRD_WS+3}], s{sb} offen offset:{off} {sc}", "hst")))
    return F

def run_stream(p, lo, hi, total, mfma, reads, pre_read, post, fillers, la):
    cur, ci, budget, per = [], 0, 0.0, 0.0
    for i in range(lo, hi):
        if i in fillers:
            assert ci >= len(cur), "previous filler list not finished"
            cur, span = fillers[i]
            ci = 0; budget = 0.0
            per = sum(w for w, _ in cur) / span
        p.wait_lg(("wf", i))
        for f in pre_mfma.get(i, []): f(p)
        p.e(mfma(i))
        j = i + la
        if j < total:
            for f in pre_read.get(j, []): f(p)
            for r in reads(j): p.lds(r, ("wf", j))
        for f in post.get(i, []): f(p)
        budget += per
        while ci < len(cur) and (budget >= cur[ci][0] - 1e-9):
            budget -= cur[ci][0]
            cur[ci][1](p); ci += 1
    while ci < len(cur):
        cur[ci][1](p); ci += 1

pre_mfma = {}

def phase1_main(p, sc, K):
    global pre_mfma
    first = {}
    for sl in range(10): first[sl] = 16 * sl
    for j in range(5):
        first[10 + j] = 160 + 8 * j
        first[15 + j] = 240 + 8 * j
    pre_read, post = {}, {}
    def bar(sl):
        def f(p):
            p.wait_vm(f"W{sl}")
            p.e("s_barrier")
        return f
    for sl in list(range(1, 20)):
        pre_read.setdefault(first[sl], []).append(bar(sl))
    nobar = lambda p: p.e("s_barrier")
    pre_read.setdefault(200 + 16, []).append(nobar)
    pre_read.setdefault(200 + 24, []).append(nobar)
    def dma(sl): return lambda p: p1_dma(p, sl)
    for i in range(2, 10):
        post.setdefault(first[i] - LA, []).append(dma(i + 6))
    post.setdefault(first[10] - LA, []).append(dma(16))
    post.setdefault(first[11] - LA, []).append(dma(17))
    post.setdefault(216 - LA, []).append(dma(18))
    post.setdefault(224 - LA, []).append(dma(19))
    pre_mfma = {}
    for s in range(40):
        pre_mfma.setdefault(4 * s, []).append(lambda p, s=s: p.wait_vm(f"X{s}"))
    pre_mfma.setdefault(200, []).append(lambda p: p.wait_vm("cload"))
    fillers = {162: (qkv_epilogue(sc), 36), 202: (gelu_epilogue(0, sc), 38), 242: (gelu_epilogue(1, sc), 38), 282: (gelu_epilogue(2, sc), 38)}
    p.wait_vm("W7")
    p.wait_lg("bw")
    p.e("s_barrier")
    return pre_read, post, fillers

def phase1_run(p, sc, K, pre_read, post, fillers):
    for j in range(LA):
        for r in p1_reads(j): p.lds(r, ("wf", j))
    p.e(f"s_cmp_ge_u32 s{S_NB}, 10\ns_cbranch_scc1 L_p1v_{K}")
    vm0, lg0 = list(p.vm), list(p.lg)
    run_stream(p, 0, 160, 320, lambda i: p1_mfma(i, False), p1_reads, pre_read, post, {}, LA)
    p.e(f"s_branch L_p1j_{K}")
    p.label(f"L_p1v_{K}")
    p.vm, p.lg = vm0, lg0
    run_stream(p, 0, 160, 320, lambda i: p1_mfma(i, True), p1_reads, pre_read, post, {}, LA)
    p.label(f"L_p1j_{K}")
    run_stream(p, 160, 320, 320, lambda i: p1_mfma(i, False), p1_reads, pre_read, post, fillers, LA)
    for w, f in gelu_epilogue(3, sc): f(p)

S_HD, S_QB, S_KMIN = SE, SE + 1, SE + 2
S_AM = SE + 4
S_TRI = 44
L_K, L_V = 0, 32768
VQ = 8
VKB = 24
VVB = 40
VS = 64
VP = 112
VPS = 128
VO = 144
VML = 176
VMX = 184
VKA, VKT, VVA, VONE = 188, 189, 190, 191
VDV = 192
VOM, VOT = 197, 198
S_TRI = 44
S_HD, S_QB, S_KMIN, S_C0, S_ODD, S_QT = 76, 77, 78, 79, 80, 81
S_AM = 82
S_AT = 90

def attn_setup_dma(p, sc):
    t = S_AT
    p.e(f"""
    s_lshl_b32 s{S_HD}, s{S_XCD}, 2
    s_and_b32 s{t}, s{S_U}, 3
    s_add_u32 s{S_HD}, s{S_HD}, s{t}
    s_lshr_b32 s{S_QB}, s{S_U}, 2
    s_and_b32 s{S_ODD}, s{S_HD}, 1
    s_lshr_b32 s{S_C0}, s{S_HD}, 1
    s_mul_i32 s{S_C0}, s{S_C0}, 5
    s_lshl_b32 s{t}, s{S_ODD}, 1
    s_add_u32 s{S_C0}, s{S_C0}, s{t}
    s_lshl_b32 s{t}, s{S_QB}, 3
    s_lshl_b32 s{t+1}, s{S_WAVE}, 2
    s_add_u32 s{t}, s{t}, s{t+1}
    s_sub_u32 s{t+1}, s{t}, 8
    s_cmp_lt_u32 s{t}, 8
    s_cselect_b32 s{t}, s{t}, s{t+1}
    s_mul_i32 s{t+1}, s{t}, 160
    s_add_u32 s{t+1}, s{t+1}, s{S_C0}
    s_add_u32 s{t+1}, s{t+1}, 80
    s_lshl_b32 s{t+1}, s{t+1}, 9
    s_add_u32 s{t+1}, s{t+1}, {QK}
    s_lshl_b32 s{t+2}, s{S_WAVE}, 13
    v_lshlrev_b32 v1, 4, v0
    """)
    for k in range(4):
        for i in range(2):
            p.e(f"s_add_u32 m0, s{t+2}, {L_K + k*2048 + i*1024}\ns_add_u32 s{t+3}, s{t+1}, {k*81920 + i*1024}")
            p.vmem(f"buffer_load_dwordx4 v1, s[{SRD_WS}:{SRD_WS+3}], s{t+3} offen {sc} lds", "KV")
    for i in range(5):
        p.e(f"""
        v_add_u32 v2, {64*i}, v0
        v_mul_u32_u24 v3, 1639, v2
        v_lshrrev_b32 v3, 16, v3
        v_mul_u32_u24 v4, 40, v3
        v_sub_u32 v2, v2, v4
        v_mul_u32_u24 v3, 20480, v3
        v_lshl_add_u32 v{VDV+i}, v2, 4, v3
        """)
    p.e(f"""
    s_mul_i32 s{t+1}, s{t}, 40960
    s_mul_i32 s{t+3}, s{S_HD}, 640
    s_add_u32 s{t+1}, s{t+1}, s{t+3}
    s_add_u32 s{t+1}, s{t+1}, {VT}
    s_mul_i32 s{t+2}, s{S_WAVE}, 5120
    """)
    for i in range(5):
        p.e(f"s_add_u32 m0, s{t+2}, {L_V + i*1024}\ns_nop 0")
        p.vmem(f"buffer_load_dwordx4 v{VDV+i}, s[{SRD_WS}:{SRD_WS+3}], s{t+1} offen {sc} lds", "KV")
    p.e(f"""
    s_lshl_b32 s{S_QT}, s{S_QB}, 3
    s_lshl_b32 s{t}, s{S_WAVE}, 1
    s_add_u32 s{S_QT}, s{S_QT}, s{t}
    s_mul_i32 s{t}, s{S_QT}, 160
    s_add_u32 s{t}, s{t}, s{S_C0}
    s_lshl_b32 s{t}, s{t}, 9
    s_add_u32 s{t}, s{t}, {QK}
    s_add_u32 s{t+1}, s{t}, 81920
    s_lshl_b32 s{t+2}, s{S_ODD}, 9
    v_add_u32 v{VOM}, s{t+2}, v1
    v_and_b32 v2, 31, v0
    v_lshlrev_b32 v2, 4, v2
    s_cmp_eq_u32 s{S_ODD}, 0
    s_cselect_b32 s{t+2}, 1024, 8
    v_add_u32 v{VKT}, s{t+2}, v2
    v_mov_b32 v3, {BIG}
    v_cmp_lt_u32 vcc, 31, v0
    v_cndmask_b32 v{VOT}, v{VKT}, v3, vcc
    """)
    for qi in range(2):
        b = VQ + 8 * qi
        p.vmem(f"buffer_load_dwordx4 v[{b}:{b+3}], v{VOM}, s[{SRD_WS}:{SRD_WS+3}], s{t+qi} offen {sc}", "Q")
        p.vmem(f"buffer_load_dwordx2 v[{b+4}:{b+5}], v{VOT}, s[{SRD_WS}:{SRD_WS+3}], s{t+qi} offen {sc}", "Q")

def attn_setup2(p):
    t = S_AT
    p.e(f"""
    v_mov_b32 v2, 1.0
    v_cndmask_b32 v{VONE}, v2, 0, vcc
    v_mov_b32 v2, 0x3f80
    v_cndmask_b32 v{VQ+6}, v2, 0, vcc
    v_mov_b32 v{VQ+7}, 0
    v_mov_b32 v{VQ+14}, v{VQ+6}
    v_mov_b32 v{VQ+15}, 0
    v_mov_b32 v{VKB+7}, 0x3f80
    v_mov_b32 v{VKB+15}, 0x3f80
    s_lshl_b32 s{t}, s{S_WAVE}, 12
    v_add_u32 v{VKA}, s{t}, v{VOM}
    v_add_u32 v{VKT}, s{t}, v{VKT}
    v_and_b32 v2, 31, v0
    v_bfe_u32 v3, v0, 2, 1
    v_bfe_u32 v4, v0, 3, 1
    v_and_b32 v5, 3, v0
    v_lshl_add_u32 v5, v3, 3, v5
    v_lshl_add_u32 v5, v4, 2, v5
    s_lshl_b32 s{t}, s{S_ODD}, 2
    v_add_u32 v5, s{t}, v5
    s_lshl_b32 s{t}, s{S_ODD}, 4
    v_subrev_u32 v4, s{t}, v2
    v_cmp_gt_u32 vcc, 16, v2
    v_cndmask_b32 v5, v4, v5, vcc
    v_lshlrev_b32 v5, 5, v5
    v_lshrrev_b32 v3, 5, v0
    v_lshl_add_u32 v5, v3, 4, v5
    s_mul_i32 s{t}, s{S_WAVE}, {4*640}
    s_add_u32 s{t}, s{t}, {L_V}
    v_add_u32 v{VVA}, s{t}, v5
    ; kmin
    s_lshl_b32 s{t}, s{S_WAVE}, 1
    s_sub_u32 s{t}, 8, s{t}
    s_cmp_eq_u32 s{S_QB}, 0
    s_cselect_b32 s{S_KMIN}, s{t}, 0
    """)
    for kt in range(8):
        p.e(f"s_cmp_gt_u32 s{S_KMIN}, {kt}\ns_cselect_b32 s{S_AM+kt}, s{t+5}, s{t+4}".replace(f"s{t+5}", "0x3f80f149").replace(f"s{t+4}", "1.0"))
    p.e("v_lshlrev_b32 v3, 2, v3\nv_sub_u32 v4, v2, v3")
    for r in range(16):
        p.e(f"v_cmp_le_i32 s[{S_TRI+2*r}:{S_TRI+2*r+1}], {8*(r>>2) + (r&3)}, v4")
    p.e("v_mov_b32 v5, 0xffff\nv_mov_b32 v6, 0xffff0000")
    for e in range(8):
        p.e(f"v_cndmask_b32 v2, 0, v5, s[{S_TRI+4*e}:{S_TRI+4*e+1}]\nv_cndmask_b32 v3, 0, v6, s[{S_TRI+4*e+2}:{S_TRI+4*e+3}]\nv_or_b32 v{VML+e}, v2, v3")
    for i in range(24):
        p.e(f"v_mov_b32 v{VVB+i}, 0x3f803f80")
    p.e(f"v_mov_b32 v{VMX}, 0xff7fffff\nv_mov_b32 v{VMX+1}, 0xff7fffff")

def attn_main(p, sc):
    t = S_AT
    p.wait_vm("Q")
    p.e("s_barrier")
    order = [0, 8, 1, 9, 2, 3, 4, 5, 6, 7]
    kbuf = {kt: VKB + 8 * (n % 2) for n, kt in enumerate(order)}
    vbuf = {kt: VVB + 8 * (n % 3) for n, kt in enumerate(order)}
    def kread(kt, ps):
        b = kbuf[kt]
        p.lds(f"ds_read_b128 v[{b}:{b+3}], v{VKA} offset:{L_K + kt*2048}", ("K", kt, ps))
        p.lds(f"ds_read_b64 v[{b+4}:{b+5}], v{VKT} offset:{L_K + kt*2048}", ("K", kt, ps))
        p.e(f"v_mov_b32 v{b+6}, " + (f"s{S_AM+kt}" if kt < 8 else "1.0"))
    def vread(kt):
        b = vbuf[kt]
        p.e(f"s_mov_b64 exec, s[{t}:{t+1}]")
        p.lds(f"ds_read_b128 v[{b}:{b+3}], v{VVA} offset:{kt*1280}", ("V", kt))
        p.lds(f"ds_read_b128 v[{b+4}:{b+7}], v{VVA} offset:{kt*1280+640}", ("V", kt))
        p.e("s_mov_b64 exec, -1")
    p.e(f"s_mov_b32 s{t}, 0xfffff\ns_mov_b32 s{t+1}, 0xfffff")
    units = [("m", 0, 0, 8), ("f", 1, 8), ("f", 0, 1), ("m", 1, 1, 9)] + [("f", q, kt) for kt in range(2, 8) for q in range(2)]
    qk = []
    for u in units:
        if u[0] == "m": qk.append([(u[1], u[2]), (u[1], u[3])])
        else: qk.append([(u[1], u[2])])
    sb = []
    n = 0
    for ops in qk:
        sb.append([VS + 16 * ((n + i) % 3) for i in range(len(ops))]); n += len(ops)
    def qk_mfmas(ui, ps):
        L = []
        for (q, kt), s in zip(qk[ui], sb[ui]):
            b = kbuf[kt]; qb_ = VQ + 8 * q
            def f1(p, q=q, kt=kt, s=s, b=b, qb_=qb_):
                p.wait_lg(("K", kt, ps))
                p.e(f"v_mfma_f32_32x32x16_bf16 v[{s}:{s+15}], v[{b}:{b+3}], v[{qb_}:{qb_+3}], 0")
            def f2(p, s=s, b=b, qb_=qb_):
                p.e(f"v_mfma_f32_32x32x16_bf16 v[{s}:{s+15}], v[{b+4}:{b+7}], v[{qb_+4}:{qb_+7}], v[{s}:{s+15}]")
            L += [f1, f2]
        return L
    last_use = {}
    for ui, ops in enumerate(qk):
        for (q, kt) in ops: last_use[kt] = ui
    def kreads_after(ui, ps):
        L = []
        for n, kt in enumerate(order):
            if n >= 2 and last_use[order[n - 2]] == ui:
                L.append(lambda p, kt=kt: kread(kt, ps))
        return L
    def merge(ui):
        f, l = sb[ui]
        return [f"v_cndmask_b32 v{l+r}, v{f+r}, v{l+r}, s[{S_TRI+2*r}:{S_TRI+2*r+1}]" for r in range(16)]
    def interleave(valu, mf):
        tot = sum(w for w, _ in valu)
        out = []; acc = 0.0; k = 0
        for w, f in valu:
            while k < len(mf) and acc >= tot * k / max(1, len(mf)) - 1e-9:
                mf[k](p); k += 1
            f(p); acc += w
        while k < len(mf):
            mf[k](p); k += 1
    E = lambda s: (2 if s.split()[0] in TRANS else 1, lambda p, s=s: p.e(s))
    kread(order[0], "A"); kread(order[1], "A")
    for f in qk_mfmas(0, "A"): f(p)
    for f in kreads_after(0, "A"): f(p)
    for ui, u in enumerate(units):
        valu = []
        s = sb[ui][-1]
        if u[0] == "m": valu += [E(x) for x in merge(ui)]
        m = VMX + u[1]
        valu += [E(f"v_max3_f32 v{m}, v{s+2*e}, v{s+2*e+1}, v{m}") for e in range(8)]
        mf = []
        if ui + 1 < len(units):
            mf = qk_mfmas(ui + 1, "A") + kreads_after(ui + 1, "A")
        if ui + 1 < len(units) and (set(sb[ui + 1]) & set(sb[ui])):
            for w, f in valu[:16]: f(p)
            valu = valu[16:]
        for f in mf: f(p)
        for w, f in valu: f(p)
    kread(order[0], "B"); kread(order[1], "B")
    vread(order[0]); vread(order[1])
    for q in range(2):
        m = VMX + q; a, b = VMX + 2, VMX + 3
        qt = VQ + 8 * q + 4
        p.e(f"""
        v_mov_b32 v{a}, v{m}
        v_permlane32_swap_b32 v{a}, v{m}
        v_max_f32 v{m}, v{a}, v{m}
        v_mul_f32 v{m}, -v{m}, v{VONE}
        v_cvt_pk_bf16_f32 v{qt+2}, v{VONE}, v{m}
        v_and_b32 v{a}, 0xffff0000, v{qt+2}
        v_sub_f32 v{a}, v{m}, v{a}
        v_cvt_pk_bf16_f32 v{qt+3}, v{a}, 0
        """)
    vlast = {}
    pv = []
    for ui, u in enumerate(units):
        kts = [u[2], u[3]] if u[0] == "m" else [u[2]]
        pv.append(kts)
        for kt in kts: vlast[kt] = ui
    first_pv = {0: True, 1: True}
    def pv_mfmas(ui):
        u = units[ui]; q = u[1]; o = VO + 16 * q
        L = []
        srcs = [VPS, VPS + 8] if u[0] == "m" else [VP + 8 * (ui % 2)]
        for kt, pb in zip(pv[ui], srcs):
            for g in range(2):
                c = "0" if first_pv[q] else f"v[{o}:{o+15}]"
                first_pv[q] = False
                vb = vbuf[kt] + 4 * g
                def f(p, kt=kt, vb=vb, pb=pb + 4 * g, c=c, o=o):
                    p.wait_lg(("V", kt))
                    p.e(f"v_mfma_f32_32x32x16_bf16 v[{o}:{o+15}], v[{vb}:{vb+3}], v[{pb}:{pb+3}], {c}")
                L.append(f)
        return L
    def vreads_after(ui):
        L = []
        for n, kt in enumerate(order):
            if n >= 3 and vlast[order[n - 3]] == ui:
                L.append(lambda p, kt=kt: vread(kt))
        return L
    for f in qk_mfmas(0, "B"): f(p)
    for f in kreads_after(0, "B"): f(p)
    vread(order[2])
    for ui, u in enumerate(units):
        s = sb[ui][-1]
        pb = VP + 8 * (ui % 2)
        pre = []
        if u[0] == "m": pre = [E(x) for x in merge(ui)]
        valu = []
        for e in range(8):
            valu += [E(f"v_exp_f32 v{s+2*e}, v{s+2*e}"), E(f"v_exp_f32 v{s+2*e+1}, v{s+2*e+1}")]
            if e > 0: valu.append(E(f"v_cvt_pk_bf16_f32 v{pb+e-1}, v{s+2*e-2}, v{s+2*e-1}"))
        valu.append(E(f"v_cvt_pk_bf16_f32 v{pb+7}, v{s+14}, v{s+15}"))
        if u[0] == "m":
            for e in range(8):
                valu.append(E(f"v_bfi_b32 v{VPS+e}, v{VML+e}, 0, v{pb+e}"))
                valu.append(E(f"v_and_b32 v{VPS+8+e}, v{VML+e}, v{pb+e}"))
        mf = []
        if ui > 0: mf += pv_mfmas(ui - 1) + vreads_after(ui - 1)
        nxt = []
        if ui + 1 < len(units): nxt = qk_mfmas(ui + 1, "B") + kreads_after(ui + 1, "B")
        if u[0] == "m":
            interleave(pre, mf)
            interleave(valu, nxt)
        else:
            interleave(valu, mf + nxt)
    for f in pv_mfmas(len(units) - 1): f(p)
    p.e(f"""
    s_mul_i32 s{t}, s{S_QT}, 80
    s_add_u32 s{t}, s{t}, s{S_C0}
    s_lshl_b32 s{t}, s{t}, 9
    s_add_u32 s{t}, s{t}, {OO}
    s_add_u32 s{t+1}, s{t}, 40960
    """)
    for q in range(2):
        o = VO + 16 * q; a, b = VMX + 2, VMX + 3
        p.e(f"v_mov_b32 v{a}, v{o+8}\nv_mov_b32 v{b}, v{o+8}\nv_permlane32_swap_b32 v{a}, v{b}\nv_rcp_f32 v{b}, v{b}")
        for r in range(12): p.e(f"v_mul_f32 v{o+r}, v{o+r}, v{b}")
        pk = VP + 8 * q
        for e in range(6): p.e(f"v_cvt_pk_bf16_f32 v{pk+e}, v{o+2*e}, v{o+2*e+1}")
        p.vmem(f"buffer_store_dwordx4 v[{pk}:{pk+3}], v{VOM}, s[{SRD_WS}:{SRD_WS+3}], s{t+q} offen {sc}", "ost")
        p.vmem(f"buffer_store_dwordx2 v[{pk+4}:{pk+5}], v{VOT}, s[{SRD_WS}:{SRD_WS+3}], s{t+q} offen {sc}", "ost")

P4_ACC = 0
def phase4(p, sc):
    t = ST
    S_MB4, S_NT, S_AH, S_AO, S_BH, S_BO, S_CUR, S_CURB = SE, SE+1, SE+2, SE+3, SE+4, SE+5, SE+6, SE+7
    VACC = 160
    VAH, VAO = 8, 12
    VB0, VB1 = 16, 17
    NBUF = 3
    VBUF = 20
    VXR, VBR = 128, 138
    p.e(f"""
    s_lshl_b32 s{S_MB4}, s{S_XCD}, 2
    s_lshr_b32 s{t}, s{S_U}, 3
    s_add_u32 s{S_MB4}, s{S_MB4}, s{t}
    s_and_b32 s{S_NT}, s{S_U}, 7
    v_lshrrev_b32 v1, 4, v0
    v_and_b32 v2, 15, v0
    v_lshlrev_b32 v3, 9, v1
    v_lshl_add_u32 v3, v2, 4, v3
    v_lshlrev_b32 v{VB0}, 4, v0
    v_add_u32 v{VB1}, 4096, v{VB0}
    """)
    for k in range(4):
        p.e(f"""
        s_add_u32 s{t}, s{S_WAVE}, {k}
        s_and_b32 s{t}, s{t}, 3
        s_lshr_b32 s{t+1}, s{t}, 1
        s_and_b32 s{t}, s{t}, 1
        s_lshl_b32 s{t}, s{t}, 8
        s_mul_i32 s{t+2}, s{t+1}, 110592
        s_add_u32 s{t+2}, s{t+2}, s{t}
        v_add_u32 v{VAH+k}, s{t+2}, v3
        s_mul_i32 s{t+2}, s{t+1}, 40960
        s_add_u32 s{t+2}, s{t+2}, s{t}
        v_add_u32 v{VAO+k}, s{t+2}, v3
        """)
    p.e(f"""
    s_mul_i32 s{t}, s{S_WAVE}, 14
    s_cmp_eq_u32 s{S_WAVE}, 3
    s_cselect_b32 s{t+1}, 1, 0
    s_sub_u32 s{t}, s{t}, s{t+1}
    s_mul_i32 s{S_AH}, s{S_MB4}, {2*110592}
    s_lshl_b32 s{t+1}, s{t}, 11
    s_add_u32 s{S_AH}, s{S_AH}, s{t+1}
    s_add_u32 s{S_AH}, s{S_AH}, {HH}
    s_mul_i32 s{t+2}, s{S_NT}, 74
    s_add_u32 s{S_BH}, s{t+2}, s{t}
    s_mul_i32 s{S_BH}, s{S_BH}, 5120
    s_add_u32 s{S_BH}, s{S_BH}, {W2T}
    s_mul_i32 s{t}, s{S_WAVE}, 5
    s_mul_i32 s{S_AO}, s{S_MB4}, {2*40960}
    s_lshl_b32 s{t+1}, s{t}, 11
    s_add_u32 s{S_AO}, s{S_AO}, s{t+1}
    s_add_u32 s{S_AO}, s{S_AO}, {OO}
    s_add_u32 s{S_BO}, s{t+2}, s{t}
    s_add_u32 s{S_BO}, s{S_BO}, 54
    s_mul_i32 s{S_BO}, s{S_BO}, 5120
    s_add_u32 s{S_BO}, s{S_BO}, {W2T}
    """)
    NS = 19
    def loads(i):
        b = VBUF + 36 * (i % NBUF)
        if i < 14:
            p.e(f"s_add_u32 s{S_CUR}, s{S_AH}, {i*2048}\ns_add_u32 s{S_CURB}, s{S_BH}, {i*5120}")
            if i == 13:
                p.e(f"s_cmp_lt_u32 s{S_WAVE}, 2\ns_cselect_b32 s{S_CUR}, s{S_CUR}, {BIG}\ns_cselect_b32 s{S_CURB}, s{S_CURB}, {BIG}")
            va = VAH
        else:
            p.e(f"s_add_u32 s{S_CUR}, s{S_AO}, {(i-14)*2048}\ns_add_u32 s{S_CURB}, s{S_BO}, {(i-14)*5120}")
            va = VAO
        L = []
        for ct in range(5):
            vb, off = (VB0, ct * 1024) if ct < 4 else (VB1, 0)
            L.append(f"buffer_load_dwordx4 v[{b+16+4*ct}:{b+19+4*ct}], v{vb}, s[{SRD_WS}:{SRD_WS+3}], s{S_CURB} offen offset:{off} {sc}")
        for k in range(4):
            L.append(f"buffer_load_dwordx4 v[{b+4*k}:{b+3+4*k}], v{va+k}, s[{SRD_WS}:{SRD_WS+3}], s{S_CUR} offen {sc}")
        return L
    for i in range(NBUF - 1):
        for x in loads(i): p.vmem(x, ("L", i))
    p.e(f"""
    s_lshl_b32 s{t}, s{S_MB4}, 6
    s_lshl_b32 s{t+1}, s{S_WAVE}, 4
    s_add_u32 s{t}, s{t}, s{t+1}
    v_add_u32 v4, s{t}, v2
    v_mul_u32_u24 v4, 1280, v4
    v_lshlrev_b32 v5, 3, v1
    v_add_u32 v4, v4, v5
    s_mul_i32 s{t+3}, s{S_NT}, 160
    """)
    for ct in range(5):
        p.vmem(f"buffer_load_dwordx2 v[{VXR+2*ct}:{VXR+2*ct+1}], v4, s[{SRD_X}:{SRD_X+3}], s{t+3} offen offset:{32*ct}", "res")
        p.vmem(f"buffer_load_dwordx2 v[{VBR+2*ct}:{VBR+2*ct+1}], v5, s[{SRD_B2}:{SRD_B2+3}], s{t+3} offen offset:{32*ct}", "res")
    for i in range(NS):
        b = VBUF + 36 * (i % NBUF)
        nxt = loads(i + NBUF - 1) if i + NBUF - 1 < NS else []
        p.wait_vm(("L", i))
        n = 0
        for k in range(4):
            for ct in range(5):
                a = VACC + 20 * k + 4 * ct
                c = "0" if i == 0 else f"v[{a}:{a+3}]"
                p.e(f"v_mfma_f32_16x16x32_bf16 v[{a}:{a+3}], v[{b+16+4*ct}:{b+19+4*ct}], v[{b+4*k}:{b+3+4*k}], {c}")
                if n % 2 == 1 and nxt:
                    p.vmem(nxt.pop(0), ("L", i + NBUF - 1))
                n += 1
        assert not nxt
    for k in range(1, 4):
        p.e(f"s_add_u32 s{t}, s{S_WAVE}, {k}\ns_and_b32 s{t}, s{t}, 3\ns_mul_i32 s{t}, s{t}, 15360\nv_add_u32 v6, s{t}, v{VB0}")
        for ct in range(5):
            a = VACC + 20 * k + 4 * ct
            p.lds(f"ds_write_b128 v6, v[{a}:{a+3}] offset:{(k-1)*5120 + ct*1024}", "red")
    p.e(f"s_mul_i32 s{t}, s{S_WAVE}, 15360\nv_add_u32 v6, s{t}, v{VB0}")
    p.wait_lg("red")
    p.e("s_barrier")
    for ct in range(5):
        for k in range(3):
            d = VBUF + 12 * ct + 4 * k
            p.lds(f"ds_read_b128 v[{d}:{d+3}], v6 offset:{k*5120 + ct*1024}", ("rr", ct))
    p.wait_vm("res")
    for ct in range(5):
        a = VACC + 4 * ct
        for j in range(2):
            for (src, tmp) in ((VXR, 96), (VBR, 98)):
                p.e(f"v_lshlrev_b32 v{tmp}, 16, v{src+2*ct+j}\nv_and_b32 v{tmp+1}, 0xffff0000, v{src+2*ct+j}")
                p.e(f"v_add_f32 v{a+2*j}, v{a+2*j}, v{tmp}\nv_add_f32 v{a+2*j+1}, v{a+2*j+1}, v{tmp+1}")
        p.wait_lg(("rr", ct))
        for k in range(3):
            d = VBUF + 12 * ct + 4 * k
            for r in range(4): p.e(f"v_add_f32 v{a+r}, v{a+r}, v{d+r}")
        p.e(f"v_cvt_pk_bf16_f32 v{a}, v{a}, v{a+1}\nv_cvt_pk_bf16_f32 v{a+1}, v{a+2}, v{a+3}")
        p.vmem(f"buffer_store_dwordx2 v[{a}:{a+1}], v4, s[{SRD_OUT}:{SRD_OUT+3}], s{t+3} offen offset:{32*ct}", "out")

def kernel_text(kname, p):
    body = p.finalize().replace("%K", kname)
    return f""".text
.globl {kname}
.p2align 8
.type {kname},@function
{kname}:
{body}L_end_{kname}:
  s_endpgm
.section .rodata,"a"
.p2align 6
.amdhsa_kernel {kname}
  .amdhsa_next_free_vgpr 512
  .amdhsa_next_free_sgpr 102
  .amdhsa_accum_offset 256
  .amdhsa_group_segment_fixed_size 0
  .amdhsa_kernarg_size 88
  .amdhsa_user_sgpr_count 2
  .amdhsa_user_sgpr_kernarg_segment_ptr 1
  .amdhsa_system_sgpr_workgroup_id_x 1
.end_amdhsa_kernel
"""

def build_multi():
    sc = ""
    ks = []
    p = Prog(); prologue(p, "k0_kernel")
    st = phase_p0(p, sc); phase_tr_issue(p); phase_p0b(p, sc, *st)
    phase_tr_finish(p, sc)
    ks.append(("k0_kernel", p))
    p = Prog(); prologue(p, "k1_kernel")
    p1_setup(p)
    for sl in range(8): p1_dma(p, sl)
    p1_setup2(p)
    st = phase1_main(p, sc, "k1_kernel")
    p1_xloads(p, sc)
    phase1_run(p, sc, "k1_kernel", *st)
    ks.append(("k1_kernel", p))
    p = Prog(); prologue(p, "k2_kernel")
    attn_setup_dma(p, sc); attn_setup2(p); attn_main(p, sc)
    ks.append(("k2_kernel", p))
    p = Prog(); prologue(p, "k3_kernel")
    phase4(p, sc)
    ks.append(("k3_kernel", p))
    txt = "".join(f"; @launch kernel={k} grid=(256,1,1) block=(256,1,1) lds={LDS_BYTES}\n" for k, _ in ks)
    txt += '.amdgcn_target "amdgcn-amd-amdhsa--gfx950"\n'
    for k, p in ks:
        txt += kernel_text(k, p)
        print(k, "instructions:", len(p.ins), "pad states:", p.npad, file=sys.stderr)
    return txt

if __name__ == "__main__":
    out = sys.argv[1] if len(sys.argv) > 1 else f"cdna_kernels/{NAME}.s"
    open(out, "w").write(build_multi())
```

```python
import sys, math, struct
from asmlib import *

NAME = "parallel_sum__sliding_block__mixer_channel_mlp__prompt"
KN = NAME + "_kernel"
BIG = 0x40000000
OPT = {}
DIAG = False
XN, CV, QK, VT, HH, OO, W2T, FLG = 0, 0x280000, 0x290000, 0x790000, 0xA10000, 0x10D0000, 0x1350000, 0x1640000
F_XN, F_TR, F_QKV, F_H, F_O = [FLG + i * 0x8000 for i in range(5)]
GEN = FLG + 5 * 0x8000
STAMPS = 0x2000000
L_BIAS, L_STAT, L_TR = 131072, 131584, 132096
L_K, L_V = 4 * 16384, 139264
LDS_BYTES = 163840
S_WAVE = 3
SRD_X, SRD_WS, SRD_W1, SRD_WQKV, SRD_OUT, SRD_B2, SRD_WT, SRD_B1 = 4, 8, 12, 16, 20, 24, 28, 32
S_WO, S_W2 = 36, 38
S_XCD, S_U, S_TAG = 40, 41, 42
T = 44
WS = f"s[{SRD_WS}:{SRD_WS+3}]"
SC = "sc1"
V_LIN = 35
V_FL0 = 36
V_TAG = 38
VSTAMP = 37

def f2u(x): return struct.unpack("<I", struct.pack("<f", x))[0]

def stamp(p, i, real=False):
    if not DIAG: return
    p.e(("s_memrealtime" if real else "s_memtime") + " s[100:101]")
    if not real and i < 30: p.e("s_memrealtime s[98:99]")
    p.e("s_waitcnt lgkmcnt(0)"); p.lg = []
    p.e(f"v_writelane_b32 v{VSTAMP}, s100, {i}")
    if not real and i < 30: p.e(f"v_writelane_b32 v{VSTAMP}, s98, {i+30}")
def stamp_flush(p):
    if not DIAG: return
    p.wait_all()
    stamp(p, 62); stamp(p, 63, True)
    p.e(f"""s_lshl_b32 s98, s2, 2
    s_add_u32 s98, s98, s{S_WAVE}
    s_lshl_b32 s98, s98, 8
    s_add_u32 s98, s98, {STAMPS}
    v_lshlrev_b32 v1, 2, v0
    buffer_store_dword v{VSTAMP}, v1, {WS}, s98 offen""")

def rbf16(p, d, s):
    p.e(f"v_cvt_pk_bf16_f32 v{d}, v{s}, v{s}\nv_and_b32 v{d}, 0xffff0000, v{d}")

def flag_store(p, base):
    p.e(f"s_lshl_b32 s{T+12}, s2, 7\ns_add_u32 s{T+12}, s{T+12}, {base}")
    p.vmem(f"buffer_store_dwordx2 v[{V_TAG}:{V_TAG+1}], v{V_FL0}, {WS}, s{T+12} offen {SC}", "flag")

npoll = [0]
def poll_issue(p, voffs, sbase, vdst, tag):
    for i, vo in enumerate(voffs):
        p.vmem(f"buffer_load_dwordx2 v[{vdst+2*i}:{vdst+2*i+1}], v{vo}, {WS}, s{sbase} offen {SC}", tag)
def poll_check(p, voffs, sbase, vdst, tag):
    k = npoll[0]; npoll[0] += 1
    def cmpall():
        for i in range(len(voffs)):
            if i == 0:
                p.e(f"v_xor_b32 v{vdst}, v{V_TAG}, v{vdst}\nv_xor_b32 v{vdst+1}, v{V_TAG+1}, v{vdst+1}\nv_or_b32 v{vdst}, v{vdst}, v{vdst+1}")
            else:
                a = vdst + 2 * i
                p.e(f"v_xor_b32 v{a}, v{V_TAG}, v{a}\nv_xor_b32 v{a+1}, v{V_TAG+1}, v{a+1}\nv_or3_b32 v{vdst}, v{vdst}, v{a}, v{a+1}")
        p.e(f"v_cmp_ne_u32 vcc, 0, v{vdst}\ns_nop 4")
    p.wait_vm(tag)
    cmpall()
    p.e(f"s_cbranch_vccz L_pok{k}")
    p.e(f"s_mov_b32 s{T+13}, 0")
    p.label(f"L_pspin{k}")
    p.e("s_sleep 2")
    for i, vo in enumerate(voffs):
        p.e(f"buffer_load_dwordx2 v[{vdst+2*i}:{vdst+2*i+1}], v{vo}, {WS}, s{sbase} offen {SC}")
    p.e(f"s_add_u32 s{T+13}, s{T+13}, 1\ns_waitcnt vmcnt(0)")
    cmpall()
    p.e(f"s_cmp_gt_u32 s{T+13}, 100000\ns_cbranch_scc1 L_pok{k}\ns_cbranch_vccnz L_pspin{k}")
    p.label(f"L_pok{k}")

def prologue(p):
    p.e(f"s_cmp_ge_u32 s2, 256\ns_cbranch_scc1 L_end")
    if DIAG:
        p.e(f"v_mov_b32 v{VSTAMP}, 0")
        stamp(p, 61, True); stamp(p, 0)
    p.e(f"""
    s_load_dwordx16 s[64:79], s[0:1], 0
    s_load_dwordx4 s[80:83], s[0:1], 64
    s_load_dwordx2 s[84:85], s[0:1], 80
    v_lshrrev_b32 v1, 6, v0
    v_and_b32 v0, 63, v0
    v_readfirstlane_b32 s{S_WAVE}, v1
    s_and_b32 s{S_XCD}, s2, 7
    s_lshr_b32 s{S_U}, s2, 3
    v_lshlrev_b32 v{V_LIN}, 4, v0
    """)

def srds(p):
    def srd(d, src, n):
        p.e(f"s_mov_b32 s{d}, s{src}\ns_mov_b32 s{d+1}, s{src+1}\ns_mov_b32 s{d+2}, {n}\ns_mov_b32 s{d+3}, 0x00020000")
    p.e("s_waitcnt lgkmcnt(0)")
    srd(SRD_X, 64, 2048 * 1280)
    return srd

A_X = 0
V_ACC1, V_ACC2 = 128, 192
WFPOOL = [224 + 4 * i for i in range(8)]
V_T1, V_T1H, V_T2, V_T2H = 100, 101, 102, 103
V_DW1, V_DW2, V_EOFF, V_C, V_BADDR, V_K1, V_K2 = 104, 105, 107, 108, 109, 113, 114
V_BIAS, V_TMP = 64, 80
S_H1, S_H0 = 60, 61
S_MB, S_NB, S_RT, S_W1B, S_P0B, S_P1B, S_WOFF, S_M0W, S_SCALE, S_XB, S_ROT = range(62, 73)
S_E = 74
S_PB = 82
S_TRU, S_TRS, S_TRC, S_TRL = 84, 85, 86, 87
S_BB = 88
LA = 4

def ids(p):
    t = T
    p.e(f"""
    s_and_b32 s{S_MB}, s{S_XCD}, 1
    s_lshl_b32 s{S_MB}, s{S_MB}, 3
    s_and_b32 s{S_ROT}, s{S_U}, 7
    s_add_u32 s{S_MB}, s{S_MB}, s{S_ROT}
    s_lshr_b32 s{S_NB}, s{S_XCD}, 1
    s_lshl_b32 s{S_NB}, s{S_NB}, 2
    s_lshr_b32 s{t}, s{S_U}, 3
    s_add_u32 s{S_NB}, s{S_NB}, s{t}
    s_lshl_b32 s{S_RT}, s{S_MB}, 2
    s_add_u32 s{S_RT}, s{S_RT}, s{S_WAVE}
    s_lshl_b32 s{t}, s{S_NB}, 8
    s_mul_i32 s{t+1}, s{S_WAVE}, {16*3840}
    s_add_u32 s{t}, s{t}, s{t+1}
    s_cmp_lt_u32 s{S_NB}, 15
    s_cselect_b32 s{S_W1B}, s{t}, {BIG}
    s_lshl_b32 s{t}, s{S_NB}, 8
    s_mul_i32 s{t+1}, s{S_WAVE}, {32*3456}
    s_add_u32 s{t}, s{t}, s{t+1}
    s_cmp_lt_u32 s{S_NB}, 14
    s_cselect_b32 s{S_P0B}, s{t}, {BIG}
    s_add_u32 s{t}, s{t}, 128
    s_cmp_lt_u32 s{S_NB}, 13
    s_cselect_b32 s{S_P1B}, s{t}, {BIG}
    s_lshl_b32 s{S_M0W}, s{S_WAVE}, 12
    v_bfe_u32 v110, v0, 2, 2
    v_and_b32 v111, 3, v0
    v_lshrrev_b32 v112, 4, v0
    v_mul_u32_u24 v{V_DW1}, 3840, v110
    v_lshl_add_u32 v{V_DW1}, v112, 6, v{V_DW1}
    v_lshl_add_u32 v{V_DW1}, v111, 4, v{V_DW1}
    v_lshrrev_b32 v{V_DW2}, 5, v0
    v_lshl_add_u32 v{V_DW2}, v{V_DW2}, 2, v110
    v_mul_u32_u24 v{V_DW2}, 3456, v{V_DW2}
    v_and_b32 v112, 1, v112
    v_lshl_add_u32 v{V_DW2}, v112, 6, v{V_DW2}
    v_lshl_add_u32 v{V_DW2}, v111, 4, v{V_DW2}
    """)

def ring_prefill(p, i):
    t = T
    p.e(f"""s_add_u32 s{t}, s{S_ROT}, {i}
    s_and_b32 s{t}, s{t}, 7
    s_lshl_b32 s{t+1}, s{t}, 14
    s_add_u32 s{t+1}, s{t+1}, s{S_M0W}
    s_mul_i32 s{t}, s{t}, {64*3840}
    s_add_u32 s{t}, s{t}, s{S_W1B}""")
    for q in range(4):
        p.e(f"s_add_u32 m0, s{t+1}, {q*1024}\ns_add_u32 s{S_WOFF}, s{t}, {4*q*3840}")
        p.vmem(f"buffer_load_dwordx4 v{V_DW1}, s[{SRD_WQKV}:{SRD_WQKV+3}], s{S_WOFF} offen lds", "Wpre")

def l2_touch_w(p):
    t = T
    p.e(f"""s_lshl_b32 s{t}, s{S_ROT}, 2
    s_add_u32 s{t}, s{t}, s{S_WAVE}
    s_mul_i32 s{t+1}, s{t}, {4*3840}
    s_lshl_b32 s{t+2}, s{S_NB}, 8
    s_add_u32 s{t+1}, s{t+1}, s{t+2}
    s_add_u32 s{t+1}, s{t+1}, {512*3840}
    s_cmp_lt_u32 s{S_NB}, 15
    s_cselect_b32 s{t+1}, s{t+1}, {BIG}""")
    p.vmem(f"buffer_load_dwordx4 v[60:63], v{V_DW1}, s[{SRD_WQKV}:{SRD_WQKV+3}], s{t+1} offen", "touch")
    p.e(f"""s_mul_i32 s{t+1}, s{t}, {20*3456}
    s_add_u32 s{t+1}, s{t+1}, s{t+2}
    s_cmp_lt_u32 s{S_NB}, 14
    s_cselect_b32 s{t+1}, s{t+1}, {BIG}
    v_lshrrev_b32 v59, 4, v0
    v_mul_u32_u24 v59, 3456, v59
    v_and_b32 v58, 15, v0
    v_lshl_add_u32 v59, v58, 4, v59""")
    for i in range(5):
        p.e(f"s_add_u32 s{t+3}, s{t+1}, {i*4*3456}")
        p.vmem(f"buffer_load_dwordx4 v[60:63], v59, s[{SRD_W1}:{SRD_W1+3}], s{t+3} offen", "touch")

def code_prefetch(p):
    t = T
    n = OPT.get("codekb", 40)
    p.e(f"""s_getpc_b64 s[{t+4}:{t+5}]
    L_pc:
    s_mov_b32 s{t+6}, L_end-L_pc
    s_mov_b32 s{t+7}, 0x00020000
    s_lshl_b32 s{t}, s{S_U}, 2
    s_add_u32 s{t}, s{t}, s{S_WAVE}
    s_lshl_b32 s{t}, s{t}, 10""")
    p.vmem(f"buffer_load_dwordx4 v[60:63], v{V_LIN}, s[{t+4}:{t+7}], s{t} offen", "touch")

def p0_loads(p):
    t = T + 8
    p.e(f"""
    v_and_b32 v2, 7, v0
    v_lshrrev_b32 v3, 3, v0
    s_lshl_b32 s{t}, s2, 3
    v_add_u32 v40, s{t}, v2
    v_mul_u32_u24 v40, 1280, v40
    v_lshl_add_u32 v40, v3, 4, v40
    s_lshl_b32 s{t+1}, s{S_WAVE}, 7
    s_add_u32 s{t+2}, s{t+1}, 1024
    s_cmp_lt_u32 s{S_WAVE}, 2
    s_cselect_b32 s{t+2}, s{t+2}, {BIG}
    """)
def p0_loads2(p):
    t = T + 8
    p.vmem(f"buffer_load_dwordx4 v[4:7], v40, s[{SRD_X}:{SRD_X+3}], s{t+1} offen", "x0")
    p.vmem(f"buffer_load_dwordx4 v[8:11], v40, s[{SRD_X}:{SRD_X+3}], s{t+1} offen offset:512", "x1")
    p.vmem(f"buffer_load_dwordx4 v[12:15], v40, s[{SRD_X}:{SRD_X+3}], s{t+2} offen", "x2")

def p0_compute(p, mid):
    t = T + 8
    vrow, vcg, vst, vs, vq = 2, 3, 41, 42, 43
    E0 = 64
    p.e(f"""
    v_lshlrev_b32 v{vst}, 9, v{vcg}
    v_lshl_add_u32 v{vst}, v{vrow}, 4, v{vst}
    s_lshr_b32 s{t}, s2, 2
    s_mul_i32 s{t}, s{t}, 40960
    s_and_b32 s{t+1}, s2, 3
    s_lshl_b32 s{t+1}, s{t+1}, 7
    s_add_u32 s{t}, s{t}, s{t+1}
    s_lshl_b32 s{t+1}, s{S_WAVE}, 12
    s_add_u32 s{t}, s{t}, s{t+1}
    s_add_u32 s{t+1}, s{t}, 16384
    s_add_u32 s{t+2}, s{t}, 32768
    s_cmp_lt_u32 s{S_WAVE}, 2
    s_cselect_b32 s{t+2}, s{t+2}, {BIG}
    v_lshlrev_b32 v46, 3, v{vrow}
    v_add_u32 v46, {L_STAT}, v46
    s_lshl_b32 s{t+3}, s{S_WAVE}, 6
    v_add_u32 v47, s{t+3}, v46
    """)
    for i in range(3):
        p.wait_vm(f"x{i}")
        for d in range(4):
            src = 4 + 4 * i + d; e = E0 + 8 * i + 2 * d
            p.e(f"v_lshlrev_b32 v{e}, 16, v{src}\nv_and_b32 v{e+1}, 0xffff0000, v{src}")
        for e in range(E0 + 8 * i, E0 + 8 + 8 * i):
            if e == E0: p.e(f"v_mov_b32 v{vs}, v{e}\nv_mul_f32 v{vq}, v{e}, v{e}")
            else: p.e(f"v_add_f32 v{vs}, v{vs}, v{e}\nv_fmac_f32 v{vq}, v{e}, v{e}")
    p.e(f"v_add_f32_dpp v{vs}, v{vs}, v{vs} row_ror:8 row_mask:0xf bank_mask:0xf")
    p.e(f"v_add_f32_dpp v{vq}, v{vq}, v{vq} row_ror:8 row_mask:0xf bank_mask:0xf")
    for sw in ("v_permlane16_swap_b32", "v_permlane32_swap_b32"):
        p.e(f"v_mov_b32 v44, v{vs}\nv_mov_b32 v45, v{vq}\n{sw} v44, v{vs}\n{sw} v45, v{vq}")
        p.e(f"v_add_f32 v{vs}, v44, v{vs}\nv_add_f32 v{vq}, v45, v{vq}")
    p.lds(f"ds_write_b64 v47, v[{vs}:{vq}]", "stw")
    mid(p)
    p.wait_lg("stw")
    p.e("s_barrier")
    for i in range(4):
        p.lds(f"ds_read_b64 v[{48+2*i}:{49+2*i}], v46 offset:{64*i}", "st")
    p.wait_lg("st")
    p.e(f"""
    v_add_f32 v48, v48, v50
    v_add_f32 v49, v49, v51
    v_add_f32 v52, v52, v54
    v_add_f32 v53, v53, v55
    v_add_f32 v48, v48, v52
    v_add_f32 v49, v49, v53
    v_mul_f32 v48, {f2u(1/640):#x}, v48
    v_mul_f32 v49, {f2u(1/640):#x}, v49
    v_fma_f32 v49, -v48, v48, v49
    v_max_f32 v49, 0, v49
    """)
    rbf16(p, 50, 49)
    p.e(f"v_add_f32 v50, {f2u(1e-5):#x}, v50")
    rbf16(p, 50, 50)
    p.e("v_sqrt_f32 v50, v50")
    rbf16(p, 50, 50)
    p.e("v_rcp_f32 v50, v50\nv_mul_f32 v52, v49, v49\nv_mul_f32 v51, v48, v50\nv_mul_f32 v52, v49, v50\nv_mul_f32 v52, v52, v50")
    for i in range(3):
        for e in range(E0 + 8 * i, E0 + 8 + 8 * i):
            p.e(f"v_fma_f32 v{e}, v{e}, v50, -v51")
        for d in range(4):
            e = E0 + 8 * i + 2 * d
            p.e(f"v_cvt_pk_bf16_f32 v{4+4*i+d}, v{e}, v{e+1}")
        p.vmem(f"buffer_store_dwordx4 v[{4+4*i}:{7+4*i}], v{vst}, {WS}, s{t+i} offen {SC}", "xnst")
    rbf16(p, 52, 52)
    p.e(f"v_add_f32 v52, {f2u(1e-5):#x}, v52")
    rbf16(p, 52, 52)
    p.e("v_sqrt_f32 v52, v52")
    rbf16(p, 52, 52)
    p.e(f"""v_rcp_f32 v52, v52
    v_lshlrev_b32 v53, 2, v{vrow}
    v_cmp_lt_u32 vcc, 7, v0
    v_mov_b32 v54, {BIG}
    v_cndmask_b32 v53, v53, v54, vcc
    s_lshl_b32 s{t+3}, s2, 5
    s_add_u32 s{t+3}, s{t+3}, {CV}
    s_cmp_eq_u32 s{S_WAVE}, 0
    s_cselect_b32 s{t+3}, s{t+3}, {BIG}
    """)
    p.vmem(f"buffer_store_dword v52, v53, {WS}, s{t+3} offen {SC}", "xnst")

V_TRF = 16
V_TRA = 32
def tr_issue(p):
    t = T
    p.e(f"""
    s_mul_i32 s{S_TRU}, s2, 3
    s_add_u32 s{S_TRU}, s{S_TRU}, s{S_WAVE}
    s_cmp_lt_u32 s{S_WAVE}, 3
    s_cselect_b32 s{S_TRU}, s{S_TRU}, 1000
    s_mul_i32 s{S_TRS}, s{S_TRU}, 6554
    s_lshr_b32 s{S_TRS}, s{S_TRS}, 16
    s_mul_i32 s{S_TRC}, s{S_TRS}, 10
    s_sub_u32 s{S_TRC}, s{S_TRU}, s{S_TRC}
    s_cmp_lt_u32 s{S_TRS}, 54
    s_cselect_b32 s{SRD_WT}, s{S_W2}, s{S_WO}
    s_cselect_b32 s{SRD_WT+1}, s{S_W2+1}, s{S_WO+1}
    s_mov_b32 s{SRD_WT+2}, {640*1280}
    s_cmov_b32 s{SRD_WT+2}, {1728*1280}
    s_mov_b32 s{SRD_WT+3}, 0x00020000
    s_cselect_b32 s{t}, 0, 54
    s_sub_u32 s{t}, s{S_TRS}, s{t}
    s_mul_i32 s{t}, s{t}, {32*1280}
    s_lshl_b32 s{t+1}, s{S_TRC}, 7
    s_add_u32 s{t}, s{t}, s{t+1}
    s_cmp_lt_u32 s{S_TRU}, 740
    s_cselect_b32 s{t}, s{t}, {BIG}
    v_lshrrev_b32 v56, 3, v0
    v_mul_u32_u24 v56, 1280, v56
    v_and_b32 v57, 7, v0
    v_lshl_add_u32 v56, v57, 4, v56
    s_add_u32 s{S_TRL}, s{S_M0W}, {L_TR}
    """)
    for q in range(4):
        p.e(f"s_add_u32 m0, s{S_TRL}, {q*1024}\ns_add_u32 s{t+1}, s{t}, {q*8*1280}")
        p.vmem(f"buffer_load_dwordx4 v56, s[{SRD_WT}:{SRD_WT+3}], s{t+1} offen lds", "trd")
    p.e(f"""
    v_lshrrev_b32 v{V_TRA}, 4, v0
    v_lshlrev_b32 v{V_TRA}, 10, v{V_TRA}
    v_bfe_u32 v57, v0, 2, 2
    v_lshl_add_u32 v{V_TRA}, v57, 7, v{V_TRA}
    v_and_b32 v57, 3, v0
    v_lshl_add_u32 v{V_TRA}, v57, 3, v{V_TRA}
    v_add_u32 v{V_TRA}, s{S_TRL}, v{V_TRA}
    """)

def tr_finish():
    F = []
    t = T + 2
    F.append((0, lambda p: p.wait_vm("trd")))
    for ct in range(4):
        b = V_TRF + 4 * ct
        F.append((1, lambda p, b=b, ct=ct: p.lds(f"ds_read_b64_tr_b16 v[{b}:{b+1}], v{V_TRA} offset:{ct*32}", f"trr{ct}")))
        F.append((1, lambda p, b=b, ct=ct: p.lds(f"ds_read_b64_tr_b16 v[{b+2}:{b+3}], v{V_TRA} offset:{ct*32+512}", f"trr{ct}")))
    for ct in range(4):
        b = V_TRF + 4 * ct
        seq = f"""s_lshl_b32 s{t}, s{S_TRC}, 2
        s_add_u32 s{t}, s{t}, {ct}
        s_mul_i32 s{t+1}, s{t}, 13108
        s_lshr_b32 s{t+1}, s{t+1}, 16
        s_mul_i32 s{t+2}, s{t+1}, 5
        s_sub_u32 s{t}, s{t}, s{t+2}
        s_mul_i32 s{t+1}, s{t+1}, 74
        s_add_u32 s{t+1}, s{t+1}, s{S_TRS}
        s_mul_i32 s{t+1}, s{t+1}, 5
        s_add_u32 s{t+1}, s{t+1}, s{t}
        s_lshl_b32 s{t+1}, s{t+1}, 10
        s_add_u32 s{t+1}, s{t+1}, {W2T}""".split("\n")
        for s in seq: F.append((1, lambda p, s=s: p.e(s)))
        F.append((2, lambda p: p.e(f"s_cmp_lt_u32 s{S_TRU}, 740\ns_cselect_b32 s{t+1}, s{t+1}, {BIG}")))
        def st(p, b=b, ct=ct):
            p.wait_lg(f"trr{ct}")
            p.vmem(f"buffer_store_dwordx4 v[{b}:{b+3}], v{V_LIN}, {WS}, s{t+1} offen {SC}", "trst")
        F.append((1, st))
    return F

def p1_dma(p, sl, qs=range(4)):
    slot = sl % 8
    for q in qs:
        if sl < 10:
            p.e(f"s_add_u32 m0, s{S_M0W}, {slot*16384 + q*1024}\ns_add_u32 s{S_WOFF}, s{S_W1B}, {(64*sl + 4*q)*3840}")
            p.vmem(f"buffer_load_dwordx4 v{V_DW1}, s[{SRD_WQKV}:{SRD_WQKV+3}], s{S_WOFF} offen lds", f"W{sl}")
        else:
            j = (sl - 10) % 5
            b = S_P0B if sl < 15 else S_P1B
            p.e(f"s_add_u32 m0, s{S_M0W}, {slot*16384 + q*1024}\ns_add_u32 s{S_WOFF}, s{b}, {(128*j + 8*q)*3456}")
            p.vmem(f"buffer_load_dwordx4 v{V_DW2}, s[{SRD_W1}:{SRD_W1+3}], s{S_WOFF} offen lds", f"W{sl}")

def p1_bias_load(p):
    t = T
    p.e(f"""s_and_b32 s{t}, s{S_WAVE}, 1
    s_lshl_b32 s{t}, s{t}, 6
    v_add_u32 v119, s{t}, v0
    v_lshlrev_b32 v117, 1, v119
    s_lshl_b32 s{t+1}, s{S_NB}, 8""")
    p.vmem(f"buffer_load_ushort v118, v117, s[{SRD_B1}:{SRD_B1+3}], s{t+1} offen", "b1")

def p1_setup2(p):
    t = T
    p.e(f"""
    v_lshlrev_b32 v115, 6, v110
    v_lshl_add_u32 v115, v112, 5, v115
    v_lshrrev_b32 v116, 1, v111
    v_and_b32 v117, 1, v111
    v_lshl_add_u32 v116, v117, 1, v116
    v_lshl_add_u32 v117, v116, 3, v115
    v_lshl_add_u32 v116, v111, 3, v115
    v_lshrrev_b32 v115, 5, v0
    v_lshl_add_u32 v{V_T2}, v115, 10, v117
    v_add_u32 v{V_T2H}, 0x10000, v{V_T2}
    s_cmp_lt_u32 s{S_NB}, 10
    s_cselect_b64 vcc, -1, 0
    v_cndmask_b32 v116, v116, v117, vcc
    v_lshl_add_u32 v{V_T1}, v115, 11, v116
    v_add_u32 v{V_T1H}, 0x10000, v{V_T1}
    v_and_b32 v116, 31, v0
    v_lshlrev_b32 v117, 5, v116
    v_lshl_add_u32 v117, v115, 4, v117
    v_cndmask_b32 v{V_EOFF}, v117, v{V_LIN}, vcc
    s_mul_i32 s{t}, s{S_RT}, 160
    s_lshl_b32 s{t+1}, s{S_NB}, 4
    s_add_u32 s{t}, s{t}, s{t+1}
    s_lshl_b32 s{t}, s{t}, 9
    s_add_u32 s{t}, s{t}, {QK}
    s_mul_i32 s{t+1}, s{S_RT}, 40960
    s_sub_u32 s{t+2}, s{S_NB}, 10
    s_lshl_b32 s{t+2}, s{t+2}, 12
    s_add_u32 s{t+1}, s{t+1}, s{t+2}
    s_add_u32 s{t+1}, s{t+1}, {VT}
    s_cmp_lt_u32 s{S_NB}, 10
    s_cselect_b32 s{t}, s{t}, s{t+1}
    s_mov_b32 s{t+1}, 20480
    s_cmov_b32 s{t+1}, 1024
    s_mov_b32 s{t+2}, 1024
    s_cmov_b32 s{t+2}, 2048
    s_cmp_lt_u32 s{S_NB}, 15
    s_cselect_b32 s{S_E}, s{t}, {BIG}
    s_add_u32 s{S_E+1}, s{S_E}, s{t+1}
    s_add_u32 s{S_E+2}, s{S_E}, s{t+2}
    s_add_u32 s{S_E+3}, s{S_E+1}, s{t+2}
    s_add_u32 s{S_E+4}, s{S_E+2}, s{t+2}
    s_add_u32 s{S_E+5}, s{S_E+3}, s{t+2}
    s_add_u32 s{S_E+6}, s{S_E+4}, s{t+2}
    s_add_u32 s{S_E+7}, s{S_E+5}, s{t+2}
    s_cmp_lt_u32 s{S_NB}, 5
    s_cselect_b32 s{S_SCALE}, {f2u(20**-0.5 * math.log2(math.e)):#x}, 1.0
    s_mul_i32 s{t}, s{S_RT}, 216
    s_lshl_b32 s{t+1}, s{S_NB}, 4
    s_add_u32 s{t}, s{t}, s{t+1}
    s_lshl_b32 s{t}, s{t}, 9
    s_add_u32 s{t}, s{t}, {HH}
    s_cmp_lt_u32 s{S_NB}, 14
    s_cselect_b32 s{S_H0}, s{t}, {BIG}
    s_add_u32 s{t}, s{t}, 4096
    s_cmp_lt_u32 s{S_NB}, 13
    s_cselect_b32 s{S_H1}, s{t}, {BIG}
    s_mul_i32 s{S_XB}, s{S_RT}, 40960
    v_mov_b32 v{V_K1}, {f2u(-2*0.7978845608028654*math.log2(math.e)*0.044715):#x}
    v_mov_b32 v{V_K2}, {f2u(-2*0.7978845608028654*math.log2(math.e)):#x}
    v_lshlrev_b32 v{V_BADDR}, 5, v115
    v_add_u32 v{V_BADDR}, {L_BIAS}, v{V_BADDR}
    v_lshlrev_b32 v119, 2, v119
    v_add_u32 v119, {L_BIAS}, v119
    v_lshlrev_b32 v116, 2, v116
    """)
    p.wait_vm("b1")
    p.e("v_lshlrev_b32 v118, 16, v118")
    p.lds("ds_write_b32 v119, v118", "bw")

S_XO = 83
def p1_xload(p, s):
    if s % 4 == 0:
        p.e(f"s_add_u32 s{S_XO}, s{S_XB}, {XN + (s//4)*4096}")
    p.vmem(f"buffer_load_dwordx4 a[{A_X+4*s}:{A_X+4*s+3}], v{V_LIN}, {WS}, s{S_XO} offen offset:{(s%4)*1024} {SC}", f"X{s}")

def wf(i): return WFPOOL[i % len(WFPOOL)]

def p1_reads(i):
    b = wf(i)
    if i < 160:
        s, tile = divmod(i, 4)
        sl = s // 4
        off = (sl % 8) * 16384 + (s % 4) * 4096 + tile * 256
        d2 = 1024; lo, hi = V_T1, V_T1H
    else:
        tau, s = divmod(i - 160, 40)
        sl = 10 + 5 * (tau // 2) + s // 8
        off = (sl % 8) * 16384 + (s % 8) * 2048 + (tau % 2) * 256
        d2 = 512; lo, hi = V_T2, V_T2H
    base = lo
    if off >= 65536:
        base = hi; off -= 65536
    return [f"ds_read_b64_tr_b16 v[{b}:{b+1}], v{base} offset:{off}",
            f"ds_read_b64_tr_b16 v[{b+2}:{b+3}], v{base} offset:{off+d2}"]

def p1_mfma(i, vtype):
    b = wf(i)
    if i < 160:
        s, tile = divmod(i, 4); acc = V_ACC1 + 16 * tile
    else:
        tau, s = divmod(i - 160, 40); acc = V_ACC2 + 16 * (tau % 2); vtype = False
    x = f"a[{A_X+4*s}:{A_X+4*s+3}]"; w = f"v[{b}:{b+3}]"
    c = "0" if s == 0 else f"v[{acc}:{acc+15}]"
    a_, b_ = (x, w) if vtype else (w, x)
    return f"v_mfma_f32_32x32x16_bf16 v[{acc}:{acc+15}], {a_}, {b_}, {c}"

def qkv_epilogue():
    F = []
    for tile in range(4):
        acc = V_ACC1 + 16 * tile
        for u in range(2):
            tb = V_TMP + 4 * ((2 * tile + u) % 2)
            for e in range(4):
                r = acc + 8 * u + 2 * e
                F.append((1, lambda p, r=r: p.e(f"v_mul_f32 v{r}, s{S_SCALE}, v{r}")))
                F.append((1, lambda p, r=r: p.e(f"v_mul_f32 v{r+1}, s{S_SCALE}, v{r+1}")))
                F.append((1, lambda p, r=r, d=tb+e: p.e(f"v_cvt_pk_bf16_f32 v{d}, v{r}, v{r+1}")))
            F.append((1, lambda p, tb=tb, k=2*tile+u: p.vmem(f"buffer_store_dwordx4 v[{tb}:{tb+3}], v{V_EOFF}, {WS}, s{S_E+k} offen {SC}", "qkvst")))
    return F

def gelu_epilogue(tau):
    F = []
    acc = V_ACC2 + 16 * (tau % 2)
    for q in range(4):
        off = (32 * tau + 16 * (q >> 1) + 4 * (q & 1)) * 4
        F.append((1, lambda p, q=q, off=off: p.lds(f"ds_read_b128 v[{V_BIAS+4*q}:{V_BIAS+4*q+3}], v{V_BADDR} offset:{off}", f"bias{tau}_{q}")))
    for u in range(2):
        pk = V_TMP + 8 + 4 * u
        for e in range(4):
            r0 = acc + 8 * u + 2 * e; b0 = V_BIAS + 8 * u + 2 * e
            t0, t1 = V_TMP + 16, V_TMP + 17
            if e % 2 == 0:
                F.append((0, lambda p, q=2*u+e//2: p.wait_lg(f"bias{tau}_{q}")))
            seq = [
                f"v_fma_f32 v{r0}, v{r0}, v{V_C}, v{b0}", f"v_fma_f32 v{r0+1}, v{r0+1}, v{V_C}, v{b0+1}",
                f"v_mul_f32 v{t0}, v{r0}, v{r0}", f"v_mul_f32 v{t1}, v{r0+1}, v{r0+1}",
                f"v_fma_f32 v{t0}, v{t0}, v{V_K1}, v{V_K2}", f"v_fma_f32 v{t1}, v{t1}, v{V_K1}, v{V_K2}",
                f"v_mul_f32 v{t0}, v{t0}, v{r0}", f"v_mul_f32 v{t1}, v{t1}, v{r0+1}",
                f"v_exp_f32 v{t0}, v{t0}", f"v_exp_f32 v{t1}, v{t1}",
                f"v_add_f32 v{t0}, 1.0, v{t0}", f"v_add_f32 v{t1}, 1.0, v{t1}",
                f"v_rcp_f32 v{t0}, v{t0}", f"v_rcp_f32 v{t1}, v{t1}",
                f"v_mul_f32 v{t0}, v{t0}, v{r0}", f"v_mul_f32 v{t1}, v{t1}, v{r0+1}",
                f"v_cvt_pk_bf16_f32 v{pk+e}, v{t0}, v{t1}"]
            for s in seq:
                F.append((2 if s.split()[0] in TRANS else 1, lambda p, s=s: p.e(s)))
        sb = S_H0 if tau < 2 else S_H1
        F.append((1, lambda p, pk=pk, sb=sb, off=(tau % 2) * 2048 + u * 1024:
                  p.vmem(f"buffer_store_dwordx4 v[{pk}:{pk+3}], v{V_LIN}, {WS}, s{sb} offen offset:{off} {SC}", "hst")))
    return F

def run_stream(p, lo, hi, total, mfma, reads, pre_mfma, pre_read, post, fillers, la):
    cur, ci, budget, per = [], 0, 0.0, 0.0
    for i in range(lo, hi):
        if i in fillers:
            while ci < len(cur):
                cur[ci][1](p); ci += 1
            cur, span = fillers[i]
            ci = 0; budget = 0.0
            per = sum(w for w, _ in cur) / span
        p.wait_lg(("wf", i))
        for f in pre_mfma.get(i, []): f(p)
        p.e(mfma(i))
        j = i + la
        if j < total:
            for f in pre_read.get(j, []): f(p)
            for r in reads(j): p.lds(r, ("wf", j))
        for f in post.get(i, []): f(p)
        budget += per
        while ci < len(cur) and (budget >= cur[ci][0] - 1e-9):
            budget -= cur[ci][0]
            cur[ci][1](p); ci += 1
    while ci < len(cur):
        cur[ci][1](p); ci += 1

def bslot(n):
    if n < 24: return 160 + 4 * n
    if n < 64: return 4 * (n - 24)
    return bslot(n - 64)
S_BCUR = 90
S_NT4, S_MB4 = 91, 92
def b_setup(p):
    t = T
    p.e(f"""
    s_lshl_b32 s{S_MB4}, s{S_XCD}, 2
    s_lshr_b32 s{t}, s{S_U}, 3
    s_add_u32 s{S_MB4}, s{S_MB4}, s{t}
    s_and_b32 s{S_NT4}, s{S_U}, 7
    s_mul_i32 s{t}, s{S_WAVE}, 14
    s_cmp_eq_u32 s{S_WAVE}, 3
    s_cselect_b32 s{t+1}, 1, 0
    s_sub_u32 s{t}, s{t}, s{t+1}
    s_mul_i32 s{t+2}, s{S_NT4}, 74
    s_add_u32 s{S_BB}, s{t+2}, s{t}
    s_mul_i32 s{S_BB}, s{S_BB}, 5120
    s_add_u32 s{S_BB}, s{S_BB}, {W2T}
    s_mul_i32 s{t}, s{S_WAVE}, 5
    s_add_u32 s{S_BB+1}, s{t+2}, s{t}
    s_add_u32 s{S_BB+1}, s{S_BB+1}, 54
    s_mul_i32 s{S_BB+1}, s{S_BB+1}, 5120
    s_add_u32 s{S_BB+1}, s{S_BB+1}, {W2T}
    """)
def b_load(p, n):
    base, m = (S_BB, n) if n < 70 else (S_BB + 1, n - 70)
    if m % 4 == 0 or n == 65:
        p.e(f"s_add_u32 s{S_BCUR}, s{base}, {(m//4)*4096}")
        if 65 <= n < 70:
            p.e(f"s_cmp_lt_u32 s{S_WAVE}, 2\ns_cselect_b32 s{S_BCUR}, s{S_BCUR}, {BIG}")
    a = bslot(n)
    p.vmem(f"buffer_load_dwordx4 a[{a}:{a+3}], v{V_LIN}, {WS}, s{S_BCUR} offen offset:{(m%4)*1024} {SC}", ("B", n))

VQ, VDV = 8, 24
VOM, VOT, VKA, VKT, VVA, VONE = 29, 30, 31, 32, 33, 34
VKB, VVB, VML, VMX = 128, 144, 168, 176
VS, VP, VPS, VO = 64, 112, 180, 196
VPOLL = 120
S_TRIP = [16, 18, 28, 30, 32, 34, 36, 38, 84, 86, 94, 96, 42, 62, 64, 66]
S_HD, S_QB, S_KMIN, S_C0, S_ODD, S_QT = 68, 69, 70, 71, 72, 73
S_AM = 74
S_VX = 58

def attn_ids(p):
    t = T
    p.e(f"""
    s_lshl_b32 s{S_HD}, s{S_XCD}, 2
    s_and_b32 s{t}, s{S_U}, 3
    s_add_u32 s{S_HD}, s{S_HD}, s{t}
    s_lshr_b32 s{S_QB}, s{S_U}, 2
    s_and_b32 s{S_ODD}, s{S_HD}, 1
    s_lshr_b32 s{S_C0}, s{S_HD}, 1
    s_mul_i32 s{S_C0}, s{S_C0}, 5
    s_lshl_b32 s{t}, s{S_ODD}, 1
    s_add_u32 s{S_C0}, s{S_C0}, s{t}
    """)

def wgid_of(mb, nb):
    xcd = (mb >> 3) | ((nb >> 2) << 1); u = (mb & 7) | ((nb & 3) << 3)
    return u * 8 + xcd

def qkv_poll_setup(p):
    t = T
    p.e(f"""
    v_and_b32 v40, 3, v0
    s_lshl_b32 s{t}, s{S_QB}, 1
    s_sub_u32 s{t}, s{t}, 2
    v_add_u32 v40, s{t}, v40
    v_max_i32 v40, 0, v40
    v_lshrrev_b32 v41, 2, v0
    v_min_u32 v41, 14, v41
    v_lshrrev_b32 v42, 3, v40
    v_lshrrev_b32 v43, 2, v41
    v_lshl_add_u32 v42, v43, 1, v42
    v_and_b32 v40, 7, v40
    v_and_b32 v41, 3, v41
    v_lshl_add_u32 v40, v41, 3, v40
    v_lshl_add_u32 v40, v40, 3, v42
    v_lshlrev_b32 v40, 7, v40
    s_mov_b32 s{S_PB}, {F_QKV}
    """)

def attn_loads():
    F = []
    t = T
    E = lambda s: F.extend((1, lambda p, x=x: p.e(x)) for x in s.strip().split("\n"))
    E(f"""s_lshl_b32 s{t}, s{S_QB}, 3
    s_lshl_b32 s{t+1}, s{S_WAVE}, 2
    s_add_u32 s{t}, s{t}, s{t+1}
    s_sub_u32 s{t+1}, s{t}, 8""")
    F.append((2, lambda p: p.e(f"s_cmp_lt_u32 s{t}, 8\ns_cselect_b32 s{t}, s{t}, s{t+1}")))
    E(f"""s_mul_i32 s{t+1}, s{t}, 160
    s_add_u32 s{t+1}, s{t+1}, s{S_C0}
    s_add_u32 s{t+1}, s{t+1}, 80
    s_lshl_b32 s{t+1}, s{t+1}, 9
    s_add_u32 s{t+1}, s{t+1}, {QK}
    s_lshl_b32 s{t+2}, s{S_WAVE}, 13""")
    for k in range(4):
        for i in range(2):
            def f(p, k=k, i=i):
                p.e(f"s_add_u32 m0, s{t+2}, {L_K + k*2048 + i*1024}\ns_add_u32 s{t+3}, s{t+1}, {k*81920 + i*1024}")
                p.vmem(f"buffer_load_dwordx4 v{V_LIN}, {WS}, s{t+3} offen {SC} lds", "KV")
            F.append((3, f))
    for i in range(5):
        E(f"""v_add_u32 v2, {64*i}, v0
        v_mul_u32_u24 v3, 1639, v2
        v_lshrrev_b32 v3, 16, v3
        v_mul_u32_u24 v4, 40, v3
        v_sub_u32 v2, v2, v4
        v_mul_u32_u24 v3, 20480, v3
        v_lshl_add_u32 v{VDV+i}, v2, 4, v3""")
    E(f"""s_mul_i32 s{t+1}, s{t}, 40960
    s_mul_i32 s{t+3}, s{S_HD}, 640
    s_add_u32 s{t+1}, s{t+1}, s{t+3}
    s_add_u32 s{t+1}, s{t+1}, {VT}
    s_mul_i32 s{t+2}, s{S_WAVE}, 5120""")
    for i in range(5):
        def f(p, i=i):
            p.e(f"s_add_u32 m0, s{t+2}, {L_V + i*1024}\ns_nop 0")
            p.vmem(f"buffer_load_dwordx4 v{VDV+i}, {WS}, s{t+1} offen {SC} lds", "KV")
        F.append((3, f))
    E(f"""s_lshl_b32 s{S_QT}, s{S_QB}, 3
    s_lshl_b32 s{t}, s{S_WAVE}, 1
    s_add_u32 s{S_QT}, s{S_QT}, s{t}
    s_mul_i32 s{t}, s{S_QT}, 160
    s_add_u32 s{t}, s{t}, s{S_C0}
    s_lshl_b32 s{t}, s{t}, 9
    s_add_u32 s{t}, s{t}, {QK}
    s_add_u32 s{t+1}, s{t}, 81920
    s_lshl_b32 s{t+2}, s{S_ODD}, 9
    v_add_u32 v{VOM}, s{t+2}, v{V_LIN}
    v_and_b32 v2, 31, v0
    v_lshlrev_b32 v2, 4, v2""")
    F.append((2, lambda p: p.e(f"s_cmp_eq_u32 s{S_ODD}, 0\ns_cselect_b32 s{t+2}, 1024, 8")))
    E(f"""v_add_u32 v{VKT}, s{t+2}, v2
    v_mov_b32 v3, {BIG}
    v_cmp_lt_u32 vcc, 31, v0
    v_cndmask_b32 v{VOT}, v{VKT}, v3, vcc""")
    for qi in range(2):
        b = VQ + 8 * qi
        F.append((1, lambda p, b=b, qi=qi: p.vmem(f"buffer_load_dwordx4 v[{b}:{b+3}], v{VOM}, {WS}, s{t+qi} offen {SC}", "Q")))
        F.append((1, lambda p, b=b, qi=qi: p.vmem(f"buffer_load_dwordx2 v[{b+4}:{b+5}], v{VOT}, {WS}, s{t+qi} offen {SC}", "Q")))
    E(f"""v_mov_b32 v2, 1.0
    v_cndmask_b32 v{VONE}, v2, 0, vcc
    v_mov_b32 v2, 0x3f80
    v_cndmask_b32 v{VQ+6}, v2, 0, vcc
    v_mov_b32 v{VQ+7}, 0
    v_mov_b32 v{VQ+14}, v{VQ+6}
    v_mov_b32 v{VQ+15}, 0
    v_mov_b32 v{VKB+7}, 0x3f80
    v_mov_b32 v{VKB+15}, 0x3f80
    s_lshl_b32 s{t}, s{S_WAVE}, 12
    s_add_u32 s{t}, s{t}, {L_K}
    v_add_u32 v{VKA}, s{t}, v{VOM}
    v_add_u32 v{VKT}, s{t}, v{VKT}
    v_and_b32 v2, 31, v0
    v_bfe_u32 v3, v0, 2, 1
    v_bfe_u32 v4, v0, 3, 1
    v_and_b32 v5, 3, v0
    v_lshl_add_u32 v5, v3, 3, v5
    v_lshl_add_u32 v5, v4, 2, v5
    s_lshl_b32 s{t}, s{S_ODD}, 2
    v_add_u32 v5, s{t}, v5
    s_lshl_b32 s{t}, s{S_ODD}, 4
    v_subrev_u32 v4, s{t}, v2
    v_cmp_gt_u32 vcc, 16, v2
    v_cndmask_b32 v5, v4, v5, vcc
    v_lshlrev_b32 v5, 5, v5
    v_lshrrev_b32 v3, 5, v0
    v_lshl_add_u32 v5, v3, 4, v5
    s_mul_i32 s{t}, s{S_WAVE}, {4*640}
    s_add_u32 s{t}, s{t}, {L_V}
    v_add_u32 v{VVA}, s{t}, v5
    s_lshl_b32 s{t}, s{S_WAVE}, 1
    s_sub_u32 s{t}, 8, s{t}""")
    F.append((2, lambda p: p.e(f"s_cmp_eq_u32 s{S_QB}, 0\ns_cselect_b32 s{S_KMIN}, s{t}, 0")))
    for kt in range(8):
        F.append((2, lambda p, kt=kt: p.e(f"s_cmp_gt_u32 s{S_KMIN}, {kt}\ns_cselect_b32 s{S_AM+kt}, 0x3f80f149, 1.0")))
    E("v_lshlrev_b32 v3, 2, v3\nv_sub_u32 v4, v2, v3")
    for r in range(16):
        E(f"v_cmp_le_i32 s[{S_TRIP[r]}:{S_TRIP[r]+1}], {8*(r>>2) + (r&3)}, v4")
    E("v_mov_b32 v5, 0xffff\nv_mov_b32 v6, 0xffff0000")
    for e in range(8):
        a, b = S_TRIP[2*e], S_TRIP[2*e+1]
        E(f"v_cndmask_b32 v2, 0, v5, s[{a}:{a+1}]\nv_cndmask_b32 v3, 0, v6, s[{b}:{b+1}]\nv_or_b32 v{VML+e}, v2, v3")
    for i in range(24): E(f"v_mov_b32 v{VVB+i}, 0x3f803f80")
    E(f"v_mov_b32 v{VMX}, 0xff7fffff\nv_mov_b32 v{VMX+1}, 0xff7fffff\ns_mov_b32 s{S_VX}, 0xfffff\ns_mov_b32 s{S_VX+1}, 0xfffff")
    return F

def attn_main(p, extraA, mid, extraB):
    t = T
    order = [0, 8, 1, 9, 2, 3, 4, 5, 6, 7]
    kbuf = {kt: VKB + 8 * (n % 2) for n, kt in enumerate(order)}
    vbuf = {kt: VVB + 8 * (n % 3) for n, kt in enumerate(order)}
    def kread(kt, ps):
        b = kbuf[kt]
        p.lds(f"ds_read_b128 v[{b}:{b+3}], v{VKA} offset:{kt*2048}", ("K", kt, ps))
        p.lds(f"ds_read_b64 v[{b+4}:{b+5}], v{VKT} offset:{kt*2048}", ("K", kt, ps))
        p.e(f"v_mov_b32 v{b+6}, " + (f"s{S_AM+kt}" if kt < 8 else "1.0"))
    def vread(kt):
        b = vbuf[kt]
        p.e(f"s_mov_b64 exec, s[{S_VX}:{S_VX+1}]")
        p.lds(f"ds_read_b128 v[{b}:{b+3}], v{VVA} offset:{kt*1280}", ("V", kt))
        p.lds(f"ds_read_b128 v[{b+4}:{b+7}], v{VVA} offset:{kt*1280+640}", ("V", kt))
        p.e("s_mov_b64 exec, -1")
    units = [("m", 0, 0, 8), ("f", 1, 8), ("f", 0, 1), ("m", 1, 1, 9)] + [("f", q, kt) for kt in range(2, 8) for q in range(2)]
    qk = [[(u[1], u[2]), (u[1], u[3])] if u[0] == "m" else [(u[1], u[2])] for u in units]
    sb = []; n = 0
    for ops in qk:
        sb.append([VS + 16 * ((n + i) % 3) for i in range(len(ops))]); n += len(ops)
    def qk_mfmas(ui, ps):
        L = []
        for (q, kt), s in zip(qk[ui], sb[ui]):
            b = kbuf[kt]; qb_ = VQ + 8 * q
            def f1(p, kt=kt, s=s, b=b, qb_=qb_):
                p.wait_lg(("K", kt, ps))
                p.e(f"v_mfma_f32_32x32x16_bf16 v[{s}:{s+15}], v[{b}:{b+3}], v[{qb_}:{qb_+3}], 0")
            def f2(p, s=s, b=b, qb_=qb_):
                p.e(f"v_mfma_f32_32x32x16_bf16 v[{s}:{s+15}], v[{b+4}:{b+7}], v[{qb_+4}:{qb_+7}], v[{s}:{s+15}]")
            L += [f1, f2]
        return L
    last_use = {}
    for ui, ops in enumerate(qk):
        for (q, kt) in ops: last_use[kt] = ui
    def kreads_after(ui, ps):
        return [(lambda p, kt=kt: kread(kt, ps)) for n, kt in enumerate(order) if n >= 2 and last_use[order[n - 2]] == ui]
    def merge(ui):
        f, l = sb[ui]
        return [f"v_cndmask_b32 v{l+r}, v{f+r}, v{l+r}, s[{S_TRIP[r]}:{S_TRIP[r]+1}]" for r in range(16)]
    def interleave(valu, mf):
        tot = sum(w for w, _ in valu); acc = 0.0; k = 0
        for w, f in valu:
            while k < len(mf) and acc >= tot * k / max(1, len(mf)) - 1e-9:
                mf[k](p); k += 1
            f(p); acc += w
        while k < len(mf):
            mf[k](p); k += 1
    E = lambda s: (2 if s.split()[0] in TRANS else 1, lambda p, s=s: p.e(s))
    kread(order[0], "A"); kread(order[1], "A")
    for f in qk_mfmas(0, "A"): f(p)
    for f in kreads_after(0, "A"): f(p)
    for ui, u in enumerate(units):
        valu = []
        s = sb[ui][-1]
        if u[0] == "m": valu += [E(x) for x in merge(ui)]
        m = VMX + u[1]
        valu += [E(f"v_max3_f32 v{m}, v{s+2*e}, v{s+2*e+1}, v{m}") for e in range(8)]
        mf = []
        if ui + 1 < len(units): mf = qk_mfmas(ui + 1, "A") + kreads_after(ui + 1, "A")
        for f in mf: f(p)
        for f in extraA.get(ui, []): f(p)
        for w, f in valu: f(p)
    stamp(p, 9)
    kread(order[0], "B"); kread(order[1], "B")
    vread(order[0]); vread(order[1])
    mid(p)
    for q in range(2):
        m = VMX + q; a = VMX + 2; qt = VQ + 8 * q + 4
        p.e(f"""
        v_mov_b32 v{a}, v{m}
        v_permlane32_swap_b32 v{a}, v{m}
        v_max_f32 v{m}, v{a}, v{m}
        v_mul_f32 v{m}, -v{m}, v{VONE}
        v_cvt_pk_bf16_f32 v{qt+2}, v{VONE}, v{m}
        v_and_b32 v{a}, 0xffff0000, v{qt+2}
        v_sub_f32 v{a}, v{m}, v{a}
        v_cvt_pk_bf16_f32 v{qt+3}, v{a}, 0
        """)
    vlast = {}; pv = []
    for ui, u in enumerate(units):
        kts = [u[2], u[3]] if u[0] == "m" else [u[2]]
        pv.append(kts)
        for kt in kts: vlast[kt] = ui
    first_pv = {0: True, 1: True}
    def pv_mfmas(ui):
        u = units[ui]; q = u[1]; o = VO + 16 * q
        L = []
        srcs = [VPS, VPS + 8] if u[0] == "m" else [VP + 8 * (ui % 2)]
        for kt, pb in zip(pv[ui], srcs):
            for g in range(2):
                c = "0" if first_pv[q] else f"v[{o}:{o+15}]"
                first_pv[q] = False
                vb = vbuf[kt] + 4 * g
                def f(p, kt=kt, vb=vb, pb=pb + 4 * g, c=c, o=o):
                    p.wait_lg(("V", kt))
                    p.e(f"v_mfma_f32_32x32x16_bf16 v[{o}:{o+15}], v[{vb}:{vb+3}], v[{pb}:{pb+3}], {c}")
                L.append(f)
        return L
    def vreads_after(ui):
        return [(lambda p, kt=kt: vread(kt)) for n, kt in enumerate(order) if n >= 3 and vlast[order[n - 3]] == ui]
    for f in qk_mfmas(0, "B"): f(p)
    for f in kreads_after(0, "B"): f(p)
    vread(order[2])
    for ui, u in enumerate(units):
        s = sb[ui][-1]; pb = VP + 8 * (ui % 2)
        pre = [E(x) for x in merge(ui)] if u[0] == "m" else []
        valu = []
        for e in range(8):
            valu += [E(f"v_exp_f32 v{s+2*e}, v{s+2*e}"), E(f"v_exp_f32 v{s+2*e+1}, v{s+2*e+1}")]
            if e > 0: valu.append(E(f"v_cvt_pk_bf16_f32 v{pb+e-1}, v{s+2*e-2}, v{s+2*e-1}"))
        valu.append(E(f"v_cvt_pk_bf16_f32 v{pb+7}, v{s+14}, v{s+15}"))
        if u[0] == "m":
            for e in range(8):
                valu.append(E(f"v_bfi_b32 v{VPS+e}, v{VML+e}, 0, v{pb+e}"))
                valu.append(E(f"v_and_b32 v{VPS+8+e}, v{VML+e}, v{pb+e}"))
        mf = []
        if ui > 0: mf += pv_mfmas(ui - 1) + vreads_after(ui - 1)
        nxt = []
        if ui + 1 < len(units): nxt = qk_mfmas(ui + 1, "B") + kreads_after(ui + 1, "B")
        nxt = nxt + extraB.get(ui, [])
        if u[0] == "m":
            interleave(pre, mf); interleave(valu, nxt)
        else:
            interleave(valu, mf + nxt)
    for f in pv_mfmas(len(units) - 1): f(p)
    stamp(p, 10)
    p.e(f"""
    s_mul_i32 s{t}, s{S_QT}, 80
    s_add_u32 s{t}, s{t}, s{S_C0}
    s_lshl_b32 s{t}, s{t}, 9
    s_add_u32 s{t}, s{t}, {OO}
    s_add_u32 s{t+1}, s{t}, 40960
    """)
    for q in range(2):
        o = VO + 16 * q; a, b = VMX + 2, VMX + 3
        p.e(f"v_mov_b32 v{a}, v{o+8}\nv_mov_b32 v{b}, v{o+8}\nv_permlane32_swap_b32 v{a}, v{b}\nv_rcp_f32 v{b}, v{b}")
        for r in range(12): p.e(f"v_mul_f32 v{o+r}, v{o+r}, v{b}")
        pk = VP + 8 * q
        for e in range(6): p.e(f"v_cvt_pk_bf16_f32 v{pk+e}, v{o+2*e}, v{o+2*e+1}")
        p.vmem(f"buffer_store_dwordx4 v[{pk}:{pk+3}], v{VOM}, {WS}, s{t+q} offen {SC}", "ost")
        p.vmem(f"buffer_store_dwordx2 v[{pk+4}:{pk+5}], v{VOT}, {WS}, s{t+q} offen {SC}", "ost")

VAH, VAO = 24, 60
APOOL = [228 + 4 * i for i in range(7)] + [40 + 4 * i for i in range(5)]
VACC, VXR, VBR, VRED = 64, 144, 154, 164
S_AH, S_AO, S_ACUR = 60, 61, 83
VPOFF4, VPOLL4 = 28, 6
NS = 19
def p4_setup():
    L = []
    t = T + 4
    L.append(f"""v_lshrrev_b32 v1, 4, v0
    v_and_b32 v2, 15, v0
    v_lshlrev_b32 v3, 9, v1
    v_lshl_add_u32 v3, v2, 4, v3""")
    for k in range(4):
        L.append(f"""s_add_u32 s{t}, s{S_WAVE}, {k}
        s_and_b32 s{t}, s{t}, 3
        s_lshr_b32 s{t+1}, s{t}, 1
        s_and_b32 s{t}, s{t}, 1
        s_lshl_b32 s{t}, s{t}, 8
        s_mul_i32 s{t+2}, s{t+1}, 110592
        s_add_u32 s{t+2}, s{t+2}, s{t}
        v_add_u32 v{VAH+k}, s{t+2}, v3
        s_mul_i32 s{t+2}, s{t+1}, 40960
        s_add_u32 s{t+2}, s{t+2}, s{t}
        v_add_u32 v{VAO+k}, s{t+2}, v3""")
    L.append(f"""s_mul_i32 s{t}, s{S_WAVE}, 14
    s_cmp_eq_u32 s{S_WAVE}, 3
    s_cselect_b32 s{t+1}, 1, 0
    s_sub_u32 s{t}, s{t}, s{t+1}
    s_mul_i32 s{S_AH}, s{S_MB4}, {2*110592}
    s_lshl_b32 s{t+1}, s{t}, 11
    s_add_u32 s{S_AH}, s{S_AH}, s{t+1}
    s_add_u32 s{S_AH}, s{S_AH}, {HH}""")
    L.append(f"""s_mul_i32 s{t}, s{S_WAVE}, 5
    s_mul_i32 s{S_AO}, s{S_MB4}, {2*40960}
    s_lshl_b32 s{t+1}, s{t}, 11
    s_add_u32 s{S_AO}, s{S_AO}, s{t+1}
    s_add_u32 s{S_AO}, s{S_AO}, {OO}""")
    L.append(f"""s_lshr_b32 s{t}, s{S_MB4}, 1
    s_lshr_b32 s{t+1}, s{t}, 3
    s_and_b32 s{t}, s{t}, 7
    s_lshl_b32 s{t}, s{t}, 3
    s_add_u32 s{t}, s{t}, s{t+1}
    v_min_u32 v4, 13, v0
    v_lshrrev_b32 v5, 2, v4
    v_and_b32 v4, 3, v4
    v_lshlrev_b32 v4, 6, v4
    v_lshl_add_u32 v4, v5, 1, v4
    v_add_u32 v4, s{t}, v4
    v_lshlrev_b32 v{VPOFF4}, 7, v4
    s_mov_b32 s{S_PB}, {F_H}""")
    return [(lambda p, x=x: p.e(x)) for x in L]

def a_load(p, i, k):
    if k == 0:
        if i < 14:
            p.e(f"s_add_u32 s{S_ACUR}, s{S_AH}, {i*2048}")
            if i == 13: p.e(f"s_cmp_lt_u32 s{S_WAVE}, 2\ns_cselect_b32 s{S_ACUR}, s{S_ACUR}, {BIG}")
        else:
            p.e(f"s_add_u32 s{S_ACUR}, s{S_AO}, {(i-14)*2048}")
    b = APOOL[(4 * i + k) % 12]
    va = (VAH if i < 14 else VAO) + k
    p.vmem(f"buffer_load_dwordx4 v[{b}:{b+3}], v{va}, {WS}, s{S_ACUR} offen {SC}", ("A", i))

def phase4(p):
    t = T
    p.e(f"""
    v_lshrrev_b32 v1, 4, v0
    v_and_b32 v2, 15, v0
    s_lshl_b32 s{t}, s{S_MB4}, 6
    s_lshl_b32 s{t+1}, s{S_WAVE}, 4
    s_add_u32 s{t}, s{t}, s{t+1}
    v_add_u32 v4, s{t}, v2
    v_mul_u32_u24 v4, 1280, v4
    v_lshlrev_b32 v5, 3, v1
    v_add_u32 v4, v4, v5
    s_mul_i32 s{t+3}, s{S_NT4}, 160
    """)
    extra = {}
    def res(p, ct):
        p.vmem(f"buffer_load_dwordx2 v[{VXR+2*ct}:{VXR+2*ct+1}], v4, s[{SRD_X}:{SRD_X+3}], s{t+3} offen offset:{32*ct}", "res")
        p.vmem(f"buffer_load_dwordx2 v[{VBR+2*ct}:{VBR+2*ct+1}], v5, s[{SRD_B2}:{SRD_B2+3}], s{t+3} offen offset:{32*ct}", "res")
    for ct in range(5): extra.setdefault(13 + ct, []).append(lambda p, ct=ct: res(p, ct))
    nb = 64
    for i in range(1, 12):
        for k in range(3):
            if nb < 95 and (nb - 64) // 5 < i:
                extra.setdefault(i, []).append(lambda p, n=nb: b_load(p, n)); nb += 1
    assert nb == 95, nb
    def oflag(p):
        p.wait_vm("ost"); p.e("s_barrier"); flag_store(p, F_O)
        p.e(f"""v_and_b32 v1, 3, v0
        v_bfe_u32 v2, v0, 2, 3
        v_lshl_add_u32 v1, v1, 3, v2
        s_lshr_b32 s{t+4}, s{S_MB4}, 2
        s_lshl_b32 s{t+4}, s{t+4}, 5
        v_add_u32 v1, s{t+4}, v1
        v_lshlrev_b32 v{VPOFF4}, 7, v1
        s_mov_b32 s{S_PB}, {F_O}""")
    pre = {OPT.get("oflag", 3): [oflag]}
    pp = OPT.get("opoll", 10)
    extra.setdefault(pp, []).append(lambda p: poll_issue(p, [VPOFF4], S_PB, VPOLL4, "opoll"))
    pre.setdefault(12, []).append(lambda p: poll_check(p, [VPOFF4], S_PB, VPOLL4, "opoll"))
    for i in range(NS):
        if i in (1, 7, 14): stamp(p, 12 + i // 7 if i > 1 else 11 + 1 - 1 + 0) if False else None
        for f in pre.get(i, []): f(p)
        todo = [(lambda p, k=k, i=i: a_load(p, i + 2, k)) for k in range(4)] if i + 2 < NS else []
        todo += extra.get(i, [])
        p.wait_vm(("A", i))
        p.wait_vm(("B", 5 * i + 4))
        n = 0
        for k in range(4):
            ab = APOOL[(4 * i + k) % 12]
            for ct in range(5):
                a = VACC + 20 * k + 4 * ct
                c = "0" if i == 0 else f"v[{a}:{a+3}]"
                bs = bslot(5 * i + ct)
                p.e(f"v_mfma_f32_16x16x32_bf16 v[{a}:{a+3}], a[{bs}:{bs+3}], v[{ab}:{ab+3}], {c}")
                if n % 2 == 1 and todo: todo.pop(0)(p)
                n += 1
        while todo: todo.pop(0)(p)
        if i == 13: stamp(p, 12)
    stamp(p, 13)
    for k in range(1, 4):
        p.e(f"s_add_u32 s{t}, s{S_WAVE}, {k}\ns_and_b32 s{t}, s{t}, 3\ns_mul_i32 s{t}, s{t}, 15360\nv_add_u32 v6, s{t}, v{V_LIN}")
        for ct in range(5):
            a = VACC + 20 * k + 4 * ct
            p.lds(f"ds_write_b128 v6, v[{a}:{a+3}] offset:{(k-1)*5120 + ct*1024}", "red")
    p.e(f"s_mul_i32 s{t}, s{S_WAVE}, 15360\nv_add_u32 v6, s{t}, v{V_LIN}")
    p.wait_vm("res")
    for ct in range(5):
        a = VACC + 4 * ct
        for j in range(2):
            for (src, tmp) in ((VXR, 224), (VBR, 226)):
                p.e(f"v_lshlrev_b32 v{tmp}, 16, v{src+2*ct+j}\nv_and_b32 v{tmp+1}, 0xffff0000, v{src+2*ct+j}")
                p.e(f"v_add_f32 v{a+2*j}, v{a+2*j}, v{tmp}\nv_add_f32 v{a+2*j+1}, v{a+2*j+1}, v{tmp+1}")
    p.wait_lg("red")
    p.e("s_barrier")
    for ct in range(5):
        for k in range(3):
            d = VRED + 12 * ct + 4 * k
            p.lds(f"ds_read_b128 v[{d}:{d+3}], v6 offset:{k*5120 + ct*1024}", ("rr", ct))
    for ct in range(5):
        a = VACC + 4 * ct
        p.wait_lg(("rr", ct))
        for k in range(3):
            d = VRED + 12 * ct + 4 * k
            for r in range(4): p.e(f"v_add_f32 v{a+r}, v{a+r}, v{d+r}")
        p.e(f"v_cvt_pk_bf16_f32 v{a}, v{a}, v{a+1}\nv_cvt_pk_bf16_f32 v{a+1}, v{a+2}, v{a+3}")
        p.vmem(f"buffer_store_dwordx2 v[{a}:{a+1}], v4, s[{SRD_OUT}:{SRD_OUT+3}], s{t+3} offen offset:{32*ct}", "out")

def build():
    p = Prog()
    t = T
    prologue(p)
    p0_loads(p)
    srd = srds(p)
    p0_loads2(p)
    srd(SRD_WS, 84, 0x10000000)
    srd(SRD_WQKV, 66, 640 * 3840)
    srd(SRD_W1, 72, 640 * 3456)
    srd(SRD_B1, 74, 3456)
    srd(SRD_B2, 78, 1280)
    srd(SRD_OUT, 80, 2048 * 1280)
    p.e(f"s_mov_b32 s{S_WO}, s68\ns_mov_b32 s{S_WO+1}, s69\ns_mov_b32 s{S_W2}, s76\ns_mov_b32 s{S_W2+1}, s77")
    code_prefetch(p)
    p.e(f"v_mov_b32 v1, 0\ns_mov_b32 s{t}, {GEN}")
    p.vmem(f"buffer_load_dword v{V_TAG}, v1, {WS}, s{t} offen {SC}", "gen")
    ids(p)
    ring_prefill(p, 0)
    stamp(p, 1)
    def mid(p):
        l2_touch_w(p)
        p1_bias_load(p)
    p0_compute(p, mid)
    stamp(p, 2)
    ring_prefill(p, 1); ring_prefill(p, 2)
    p.wait_vm("gen")
    p.e(f"""v_add_u32 v{V_TAG}, 1, v{V_TAG}
    s_mov_b32 s{t}, 0x9e3779b1
    v_mul_lo_u32 v{V_TAG+1}, v{V_TAG}, s{t}
    v_xor_b32 v{V_TAG+1}, 0x5bd1e995, v{V_TAG+1}
    s_cmp_eq_u32 s{S_WAVE}, 0
    s_cselect_b32 s{t}, 0, {BIG}
    v_mov_b32 v1, {BIG}
    v_mov_b32 v2, s{t}
    v_cmp_eq_u32 vcc, 0, v0
    v_cndmask_b32 v{V_FL0}, v1, v2, vcc""")
    p1_setup2(p)
    p.wait_vm("xnst")
    p.e("s_barrier")
    flag_store(p, F_XN)
    stamp(p, 3)
    tr_issue(p)
    for i in range(3, 8): ring_prefill(p, i)
    p.e(f"v_and_b32 v40, 15, v0\nv_lshlrev_b32 v40, 7, v40\ns_lshl_b32 s{S_PB}, s{S_MB}, 11\ns_add_u32 s{S_PB}, s{S_PB}, {F_XN}")
    poll_issue(p, [40], S_PB, VPOLL, "xpoll")
    b_setup(p); attn_ids_later = True
    poll_check(p, [40], S_PB, VPOLL, "xpoll")
    stamp(p, 4)
    xla = OPT.get("xla", 10)
    for s in range(xla): p1_xload(p, s)
    p.e(f"s_lshl_b32 s{t}, s{S_RT}, 7\ns_add_u32 s{t}, s{t}, {CV}")
    p.vmem(f"buffer_load_dword v{V_C}, v116, {WS}, s{t} offen {SC}", "cload")
    p.wait_lg("bw")
    p.e("s_barrier")
    first = {sl: 16 * sl for sl in range(10)}
    for j in range(5):
        first[10 + j] = 160 + 8 * j; first[15 + j] = 240 + 8 * j
    pre_read, post, pre_mfma = {}, {}, {}
    def bar(*tags, after=None):
        def f(p):
            for tg in tags: p.wait_vm(tg)
            p.e("s_barrier")
            if after: after(p)
        return f
    def at_read(i, f): pre_read.setdefault(i, []).append(f)
    def at_post(i, f): post.setdefault(i, []).append(f)
    def dma(at, sl, sp):
        for q in range(4): at_post(at + q * sp, lambda p, q=q: p1_dma(p, sl, [q]))
    at_read(48, bar())
    dma(45, 8, 4); dma(63, 9, 4)
    at_read(96, bar("trst", after=lambda p: flag_store(p, F_TR)))
    dma(95, 10, 4); dma(111, 11, 4)
    at_read(128, bar("W8", "W9"))
    dma(127, 12, 4); dma(143, 13, 4)
    at_read(160, bar("W10", "W11"))
    dma(158, 14, 2); dma(166, 15, 3)
    at_read(176, bar("W12", "W13", "W14"))
    dma(178, 16, 3); dma(190, 17, 3)
    at_read(224, bar())
    dma(221, 18, 2); dma(229, 19, 2)
    at_read(240, bar("W15", "W16", "W17", "qkvst", after=lambda p: flag_store(p, F_QKV)))
    at_read(264, bar("W18", "W19"))
    for s in range(40): pre_mfma.setdefault(4 * s, []).append(lambda p, s=s: p.wait_vm(f"X{s}"))
    for s in range(xla, 40): at_post(4 * (s - xla) + 3, lambda p, s=s: p1_xload(p, s))
    pre_mfma.setdefault(200, []).append(lambda p: p.wait_vm("cload"))
    def trpoll_issue(p):
        p.e(f"v_lshlrev_b32 v40, 7, v0\nv_add_u32 v41, 0x2000, v40\nv_add_u32 v42, 0x4000, v40\nv_add_u32 v43, 0x6000, v40\ns_mov_b32 s{S_PB}, {F_TR}")
        poll_issue(p, [40, 41, 42, 43], S_PB, VPOLL, "trpoll")
    at_post(170, trpoll_issue)
    at_post(196, lambda p: poll_check(p, [40, 41, 42, 43], S_PB, VPOLL, "trpoll"))
    for n in range(24): at_post(200 + 3 * n, lambda p, n=n: b_load(p, n))
    at_post(272, lambda p: (attn_ids(p), qkv_poll_setup(p)))
    qp = OPT.get("qpoll", 284)
    at_post(qp, lambda p: poll_issue(p, [40], S_PB, VPOLL, "qpoll"))
    fill1 = {20: (tr_finish(), 60)}
    g2 = gelu_epilogue(2)
    fill2 = {162: (qkv_epilogue(), 36), 202: (gelu_epilogue(0), 38), 242: (gelu_epilogue(1), 38), 282: (g2, 38)}
    for j in range(LA):
        for r in p1_reads(j): p.lds(r, ("wf", j))
    p.e(f"s_cmp_ge_u32 s{S_NB}, 10\ns_cbranch_scc1 L_p1v")
    vm0, lg0 = list(p.vm), list(p.lg)
    run_stream(p, 0, 160, 320, lambda i: p1_mfma(i, False), p1_reads, pre_mfma, pre_read, post, fill1, LA)
    p.e("s_branch L_p1j")
    p.label("L_p1v")
    p.vm, p.lg = vm0, lg0
    fill1 = {20: (tr_finish(), 60)}
    run_stream(p, 0, 160, 320, lambda i: p1_mfma(i, True), p1_reads, pre_mfma, pre_read, post, fill1, LA)
    p.label("L_p1j")
    stamp(p, 5)
    run_stream(p, 160, 320, 320, lambda i: p1_mfma(i, False), p1_reads, pre_mfma, pre_read, post, fill2, LA)
    stamp(p, 6)
    poll_check(p, [40], S_PB, VPOLL, "qpoll")
    al = attn_loads()
    nl = [i for i, (w, f) in enumerate(al)]
    cut = max(i for i, (w, f) in enumerate(al) if "vmem" in f.__code__.co_names) + 1
    for w, f in al[:cut]: f(p)
    for w, f in al[cut:cut + 9]: f(p)
    g3 = gelu_epilogue(3)
    bn = 24
    for k, (w, f) in enumerate(g3):
        f(p)
        if k % 18 == 17 and bn < 32:
            b_load(p, bn); bn += 1
    for w, f in al[cut + 9:]: f(p)
    stamp(p, 7)
    p.wait_vm("Q")
    p.e("s_barrier")
    stamp(p, 8)
    extraA = {}
    for ui in range(16):
        if bn < 48:
            extraA.setdefault(ui, []).append(lambda p, n=bn: b_load(p, n)); bn += 1
    def mid(p):
        p.wait_vm("hst"); p.e("s_barrier"); flag_store(p, F_H)
    extraB = {}
    for ui in range(8):
        for k in range(2):
            if bn < 64:
                extraB.setdefault(ui, []).append(lambda p, n=bn: b_load(p, n)); bn += 1
    assert bn == 64
    ps = p4_setup()
    for k, f in enumerate(ps): extraB.setdefault(2 + k, []).append(f)
    assert 2 + len(ps) <= 11
    extraB.setdefault(11, []).append(lambda p: poll_issue(p, [VPOFF4], S_PB, VPOLL4, "hpoll"))
    extraB.setdefault(13, []).append(lambda p: poll_check(p, [VPOFF4], S_PB, VPOLL4, "hpoll"))
    for i in range(2):
        for k in range(4): extraB.setdefault(14 + i, []).append(lambda p, i=i, k=k: a_load(p, i, k))
    attn_main(p, extraA, mid, extraB)
    stamp(p, 11)
    phase4(p)
    p.e(f"s_cmp_eq_u32 s2, 0\ns_cselect_b32 s{t}, {GEN}, s{t+13}\ns_mov_b32 s{t+1}, {BIG}\ns_cselect_b32 s{t}, s{t}, s{t+1}")
    p.vmem(f"buffer_store_dword v{V_TAG}, v{V_FL0}, {WS}, s{t} offen {SC}", "gen2")
    stamp_flush(p)
    body = p.finalize()
    print("instructions:", len(p.ins), "pad states:", p.npad, file=sys.stderr)
    return f"""; @launch grid=(256,1,1) block=(256,1,1) lds={LDS_BYTES}
.amdgcn_target "amdgcn-amd-amdhsa--gfx950"
.text
.globl {KN}
.p2align 8
.type {KN},@function
{KN}:
{body}L_end:
  s_endpgm
.section .rodata,"a"
.p2align 6
.amdhsa_kernel {KN}
  .amdhsa_next_free_vgpr 512
  .amdhsa_next_free_sgpr 102
  .amdhsa_accum_offset 256
  .amdhsa_group_segment_fixed_size 0
  .amdhsa_kernarg_size 88
  .amdhsa_user_sgpr_count 2
  .amdhsa_user_sgpr_kernarg_segment_ptr 1
  .amdhsa_system_sgpr_workgroup_id_x 1
.end_amdhsa_kernel
"""

if __name__ == "__main__":
    DIAG = "diag" in sys.argv[2:]
    for a in sys.argv[2:]:
        if "=" in a:
            k, v = a.split("="); OPT[k] = int(v)
    out = sys.argv[1] if len(sys.argv) > 1 else f"cdna_kernels/{NAME}.s"
    open(out, "w").write(build())
```

```python
import sys, math, struct
from asmlib import *

NAME = "parallel_sum__sliding_block__mixer_channel_mlp__prompt"
KN = NAME + "_kernel"
BIG = 0x40000000
OPT = {}
DIAG = False
XN, CV, QK, VT, HH, OO, W2T, FLG = 0, 0x280000, 0x290000, 0x790000, 0xA10000, 0x10D0000, 0x1350000, 0x1640000
F_XN, F_TR, F_QKV, F_H, F_O = [FLG + i * 0x8000 for i in range(5)]
GEN = FLG + 5 * 0x8000
STAMPS = 0x2000000
L_BIAS, L_STAT, L_TR = 131072, 131584, 132096
L_K, L_V = 4 * 16384, 139264
LDS_BYTES = 163840
S_WAVE = 3
SRD_X, SRD_WS, SRD_W1, SRD_WQKV, SRD_OUT, SRD_B2, SRD_WT, SRD_B1 = 4, 8, 12, 16, 20, 24, 28, 32
S_WO, S_W2 = 36, 38
S_XCD, S_U, S_TAG = 40, 41, 42
T = 44
WS = f"s[{SRD_WS}:{SRD_WS+3}]"
SC = "sc1"
SST = "sc1"
V_LIN = 35
V_FL0 = 36
V_TAG = 38
VSTAMP = 37

def f2u(x): return struct.unpack("<I", struct.pack("<f", x))[0]

def stamp(p, i, real=False):
    if not DIAG: return
    p.e(("s_memrealtime" if real else "s_memtime") + " s[100:101]")
    if not real and i < 30: p.e("s_memrealtime s[98:99]")
    p.e("s_waitcnt lgkmcnt(0)"); p.lg = []
    p.e(f"v_writelane_b32 v{VSTAMP}, s100, {i}")
    if not real and i < 30: p.e(f"v_writelane_b32 v{VSTAMP}, s98, {i+30}")
def stamp_flush(p):
    if not DIAG: return
    p.wait_all()
    stamp(p, 62); stamp(p, 63, True)
    p.e(f"""s_lshl_b32 s98, s2, 2
    s_add_u32 s98, s98, s{S_WAVE}
    s_lshl_b32 s98, s98, 8
    s_add_u32 s98, s98, {STAMPS}
    v_lshlrev_b32 v1, 2, v0
    buffer_store_dword v{VSTAMP}, v1, {WS}, s98 offen""")

def rbf16(p, d, s):
    p.e(f"v_cvt_pk_bf16_f32 v{d}, v{s}, v{s}\nv_and_b32 v{d}, 0xffff0000, v{d}")

def flag_store(p, base):
    p.e(f"s_lshl_b32 s{T+12}, s2, 7\ns_add_u32 s{T+12}, s{T+12}, {base}")
    p.vmem(f"buffer_store_dwordx2 v[{V_TAG}:{V_TAG+1}], v{V_FL0}, {WS}, s{T+12} offen {SC}", "flag")

npoll = [0]
def poll_issue(p, voffs, sbase, vdst, tag):
    for i, vo in enumerate(voffs):
        p.vmem(f"buffer_load_dwordx2 v[{vdst+2*i}:{vdst+2*i+1}], v{vo}, {WS}, s{sbase} offen {SC}", tag)
def poll_check(p, voffs, sbase, vdst, tag):
    k = npoll[0]; npoll[0] += 1
    def cmpall():
        for i in range(len(voffs)):
            if i == 0:
                p.e(f"v_xor_b32 v{vdst}, v{V_TAG}, v{vdst}\nv_xor_b32 v{vdst+1}, v{V_TAG+1}, v{vdst+1}\nv_or_b32 v{vdst}, v{vdst}, v{vdst+1}")
            else:
                a = vdst + 2 * i
                p.e(f"v_xor_b32 v{a}, v{V_TAG}, v{a}\nv_xor_b32 v{a+1}, v{V_TAG+1}, v{a+1}\nv_or3_b32 v{vdst}, v{vdst}, v{a}, v{a+1}")
        p.e(f"v_cmp_ne_u32 vcc, 0, v{vdst}\ns_nop 4")
    p.wait_vm(tag)
    cmpall()
    p.e(f"s_cbranch_vccz L_pok{k}")
    p.e(f"s_mov_b32 s{T+13}, 0")
    p.label(f"L_pspin{k}")
    p.e("s_sleep 2")
    for i, vo in enumerate(voffs):
        p.e(f"buffer_load_dwordx2 v[{vdst+2*i}:{vdst+2*i+1}], v{vo}, {WS}, s{sbase} offen {SC}")
    p.e(f"s_add_u32 s{T+13}, s{T+13}, 1\ns_waitcnt vmcnt(0)")
    cmpall()
    p.e(f"s_cmp_gt_u32 s{T+13}, 100000\ns_cbranch_scc1 L_pok{k}\ns_cbranch_vccnz L_pspin{k}")
    p.label(f"L_pok{k}")

def prologue(p):
    p.e(f"s_cmp_ge_u32 s2, 256\ns_cbranch_scc1 L_end")
    if DIAG:
        p.e(f"v_mov_b32 v{VSTAMP}, 0")
        stamp(p, 61, True); stamp(p, 0)
    p.e(f"""
    s_load_dwordx16 s[64:79], s[0:1], 0
    s_load_dwordx4 s[80:83], s[0:1], 64
    s_load_dwordx2 s[84:85], s[0:1], 80
    v_lshrrev_b32 v1, 6, v0
    v_and_b32 v0, 63, v0
    v_readfirstlane_b32 s{S_WAVE}, v1
    s_and_b32 s{S_XCD}, s2, 7
    s_lshr_b32 s{S_U}, s2, 3
    v_lshlrev_b32 v{V_LIN}, 4, v0
    """)

def srds(p):
    def srd(d, src, n):
        p.e(f"s_mov_b32 s{d}, s{src}\ns_mov_b32 s{d+1}, s{src+1}\ns_mov_b32 s{d+2}, {n}\ns_mov_b32 s{d+3}, 0x00020000")
    p.e("s_waitcnt lgkmcnt(0)")
    srd(SRD_X, 64, 2048 * 1280)
    return srd

A_X = 0
V_ACC1, V_ACC2 = 128, 192
WFPOOL = [224 + 4 * i for i in range(8)]
V_T1, V_T1H, V_T2, V_T2H = 100, 101, 102, 103
V_DW1, V_DW2, V_EOFF, V_C, V_BADDR, V_K1, V_K2 = 104, 105, 107, 108, 109, 113, 114
V_BIAS, V_TMP = 64, 80
S_H1, S_H0 = 60, 61
S_MB, S_NB, S_RT, S_W1B, S_P0B, S_P1B, S_WOFF, S_M0W, S_SCALE, S_XB, S_ROT = range(62, 73)
S_E = 74
S_PB = 82
S_TRU, S_TRS, S_TRC, S_TRL = 84, 85, 86, 87
S_BB = 88
LA = 4

def ids(p):
    t = T
    p.e(f"""
    s_and_b32 s{S_MB}, s{S_XCD}, 1
    s_lshl_b32 s{S_MB}, s{S_MB}, 3
    s_and_b32 s{S_ROT}, s{S_U}, 7
    s_add_u32 s{S_MB}, s{S_MB}, s{S_ROT}
    s_lshr_b32 s{S_NB}, s{S_XCD}, 1
    s_lshl_b32 s{S_NB}, s{S_NB}, 2
    s_lshr_b32 s{t}, s{S_U}, 3
    s_add_u32 s{S_NB}, s{S_NB}, s{t}
    s_lshl_b32 s{S_RT}, s{S_MB}, 2
    s_add_u32 s{S_RT}, s{S_RT}, s{S_WAVE}
    s_lshl_b32 s{t}, s{S_NB}, 8
    s_mul_i32 s{t+1}, s{S_WAVE}, {16*3840}
    s_add_u32 s{t}, s{t}, s{t+1}
    s_cmp_lt_u32 s{S_NB}, 15
    s_cselect_b32 s{S_W1B}, s{t}, {BIG}
    s_lshl_b32 s{t}, s{S_NB}, 8
    s_mul_i32 s{t+1}, s{S_WAVE}, {32*3456}
    s_add_u32 s{t}, s{t}, s{t+1}
    s_cmp_lt_u32 s{S_NB}, 14
    s_cselect_b32 s{S_P0B}, s{t}, {BIG}
    s_add_u32 s{t}, s{t}, 128
    s_cmp_lt_u32 s{S_NB}, 13
    s_cselect_b32 s{S_P1B}, s{t}, {BIG}
    s_lshl_b32 s{S_M0W}, s{S_WAVE}, 12
    v_bfe_u32 v110, v0, 2, 2
    v_and_b32 v111, 3, v0
    v_lshrrev_b32 v112, 4, v0
    v_mul_u32_u24 v{V_DW1}, 3840, v110
    v_lshl_add_u32 v{V_DW1}, v112, 6, v{V_DW1}
    v_lshl_add_u32 v{V_DW1}, v111, 4, v{V_DW1}
    v_lshrrev_b32 v{V_DW2}, 5, v0
    v_lshl_add_u32 v{V_DW2}, v{V_DW2}, 2, v110
    v_mul_u32_u24 v{V_DW2}, 3456, v{V_DW2}
    v_and_b32 v112, 1, v112
    v_lshl_add_u32 v{V_DW2}, v112, 6, v{V_DW2}
    v_lshl_add_u32 v{V_DW2}, v111, 4, v{V_DW2}
    """)

def ring_prefill(p, i):
    t = T
    p.e(f"""s_add_u32 s{t}, s{S_ROT}, {i}
    s_and_b32 s{t}, s{t}, 7
    s_lshl_b32 s{t+1}, s{t}, 14
    s_add_u32 s{t+1}, s{t+1}, s{S_M0W}
    s_mul_i32 s{t}, s{t}, {64*3840}
    s_add_u32 s{t}, s{t}, s{S_W1B}""")
    for q in range(4):
        p.e(f"s_add_u32 m0, s{t+1}, {q*1024}\ns_add_u32 s{S_WOFF}, s{t}, {4*q*3840}")
        p.vmem(f"buffer_load_dwordx4 v{V_DW1}, s[{SRD_WQKV}:{SRD_WQKV+3}], s{S_WOFF} offen lds", "Wpre")

def l2_touch_w(p):
    t = T
    p.e(f"""s_lshl_b32 s{t}, s{S_ROT}, 2
    s_add_u32 s{t}, s{t}, s{S_WAVE}
    s_mul_i32 s{t+1}, s{t}, {4*3840}
    s_lshl_b32 s{t+2}, s{S_NB}, 8
    s_add_u32 s{t+1}, s{t+1}, s{t+2}
    s_add_u32 s{t+1}, s{t+1}, {512*3840}
    s_cmp_lt_u32 s{S_NB}, 15
    s_cselect_b32 s{t+1}, s{t+1}, {BIG}""")
    p.vmem(f"buffer_load_dwordx4 v[60:63], v{V_DW1}, s[{SRD_WQKV}:{SRD_WQKV+3}], s{t+1} offen", "touch")
    p.e(f"""s_mul_i32 s{t+1}, s{t}, {20*3456}
    s_add_u32 s{t+1}, s{t+1}, s{t+2}
    s_cmp_lt_u32 s{S_NB}, 14
    s_cselect_b32 s{t+1}, s{t+1}, {BIG}
    v_lshrrev_b32 v59, 4, v0
    v_mul_u32_u24 v59, 3456, v59
    v_and_b32 v58, 15, v0
    v_lshl_add_u32 v59, v58, 4, v59""")
    for i in range(5):
        p.e(f"s_add_u32 s{t+3}, s{t+1}, {i*4*3456}")
        p.vmem(f"buffer_load_dwordx4 v[60:63], v59, s[{SRD_W1}:{SRD_W1+3}], s{t+3} offen", "touch")

def code_prefetch(p):
    t = T
    n = OPT.get("codekb", 40)
    p.e(f"""s_getpc_b64 s[{t+4}:{t+5}]
    L_pc:
    s_mov_b32 s{t+6}, L_end-L_pc
    s_mov_b32 s{t+7}, 0x00020000
    s_lshl_b32 s{t}, s{S_U}, 2
    s_add_u32 s{t}, s{t}, s{S_WAVE}
    s_lshl_b32 s{t}, s{t}, 10""")
    p.vmem(f"buffer_load_dwordx4 v[60:63], v{V_LIN}, s[{t+4}:{t+7}], s{t} offen", "touch")

def p0_loads(p):
    t = T + 8
    p.e(f"""
    v_and_b32 v2, 7, v0
    v_lshrrev_b32 v3, 3, v0
    s_lshl_b32 s{t}, s2, 3
    v_add_u32 v40, s{t}, v2
    v_mul_u32_u24 v40, 1280, v40
    v_lshl_add_u32 v40, v3, 4, v40
    s_lshl_b32 s{t+1}, s{S_WAVE}, 7
    s_add_u32 s{t+2}, s{t+1}, 1024
    s_cmp_lt_u32 s{S_WAVE}, 2
    s_cselect_b32 s{t+2}, s{t+2}, {BIG}
    """)
def p0_loads2(p):
    t = T + 8
    p.vmem(f"buffer_load_dwordx4 v[4:7], v40, s[{SRD_X}:{SRD_X+3}], s{t+1} offen", "x0")
    p.vmem(f"buffer_load_dwordx4 v[8:11], v40, s[{SRD_X}:{SRD_X+3}], s{t+1} offen offset:512", "x1")
    p.vmem(f"buffer_load_dwordx4 v[12:15], v40, s[{SRD_X}:{SRD_X+3}], s{t+2} offen", "x2")

def p0_compute(p, mid):
    t = T + 8
    vrow, vcg, vst, vs, vq = 2, 3, 41, 42, 43
    E0 = 64
    p.e(f"""
    v_lshlrev_b32 v{vst}, 9, v{vcg}
    v_lshl_add_u32 v{vst}, v{vrow}, 4, v{vst}
    s_lshr_b32 s{t}, s2, 2
    s_mul_i32 s{t}, s{t}, 40960
    s_and_b32 s{t+1}, s2, 3
    s_lshl_b32 s{t+1}, s{t+1}, 7
    s_add_u32 s{t}, s{t}, s{t+1}
    s_lshl_b32 s{t+1}, s{S_WAVE}, 12
    s_add_u32 s{t}, s{t}, s{t+1}
    s_add_u32 s{t+1}, s{t}, 16384
    s_add_u32 s{t+2}, s{t}, 32768
    s_cmp_lt_u32 s{S_WAVE}, 2
    s_cselect_b32 s{t+2}, s{t+2}, {BIG}
    v_lshlrev_b32 v46, 3, v{vrow}
    v_add_u32 v46, {L_STAT}, v46
    s_lshl_b32 s{t+3}, s{S_WAVE}, 6
    v_add_u32 v47, s{t+3}, v46
    """)
    for i in range(3):
        p.wait_vm(f"x{i}")
        for d in range(4):
            src = 4 + 4 * i + d; e = E0 + 8 * i + 2 * d
            p.e(f"v_lshlrev_b32 v{e}, 16, v{src}\nv_and_b32 v{e+1}, 0xffff0000, v{src}")
        for e in range(E0 + 8 * i, E0 + 8 + 8 * i):
            if e == E0: p.e(f"v_mov_b32 v{vs}, v{e}\nv_mul_f32 v{vq}, v{e}, v{e}")
            else: p.e(f"v_add_f32 v{vs}, v{vs}, v{e}\nv_fmac_f32 v{vq}, v{e}, v{e}")
    p.e(f"v_add_f32_dpp v{vs}, v{vs}, v{vs} row_ror:8 row_mask:0xf bank_mask:0xf")
    p.e(f"v_add_f32_dpp v{vq}, v{vq}, v{vq} row_ror:8 row_mask:0xf bank_mask:0xf")
    for sw in ("v_permlane16_swap_b32", "v_permlane32_swap_b32"):
        p.e(f"v_mov_b32 v44, v{vs}\nv_mov_b32 v45, v{vq}\n{sw} v44, v{vs}\n{sw} v45, v{vq}")
        p.e(f"v_add_f32 v{vs}, v44, v{vs}\nv_add_f32 v{vq}, v45, v{vq}")
    stamp(p, 25)
    p.lds(f"ds_write_b64 v47, v[{vs}:{vq}]", "stw")
    mid(p)
    p.wait_lg("stw")
    p.e("s_barrier")
    for i in range(4):
        p.lds(f"ds_read_b64 v[{48+2*i}:{49+2*i}], v46 offset:{64*i}", "st")
    p.wait_lg("st")
    p.e(f"""
    v_add_f32 v48, v48, v50
    v_add_f32 v49, v49, v51
    v_add_f32 v52, v52, v54
    v_add_f32 v53, v53, v55
    v_add_f32 v48, v48, v52
    v_add_f32 v49, v49, v53
    v_mul_f32 v48, {f2u(1/640):#x}, v48
    v_mul_f32 v49, {f2u(1/640):#x}, v49
    v_fma_f32 v49, -v48, v48, v49
    v_max_f32 v49, 0, v49
    """)
    rbf16(p, 50, 49)
    p.e(f"v_add_f32 v50, {f2u(1e-5):#x}, v50")
    rbf16(p, 50, 50)
    p.e("v_sqrt_f32 v50, v50")
    rbf16(p, 50, 50)
    p.e("v_rcp_f32 v50, v50\nv_mul_f32 v52, v49, v49\nv_mul_f32 v51, v48, v50\nv_mul_f32 v52, v49, v50\nv_mul_f32 v52, v52, v50")
    for i in range(3):
        for e in range(E0 + 8 * i, E0 + 8 + 8 * i):
            p.e(f"v_fma_f32 v{e}, v{e}, v50, -v51")
        for d in range(4):
            e = E0 + 8 * i + 2 * d
            p.e(f"v_cvt_pk_bf16_f32 v{4+4*i+d}, v{e}, v{e+1}")
        p.vmem(f"buffer_store_dwordx4 v[{4+4*i}:{7+4*i}], v{vst}, {WS}, s{t+i} offen {SC}", "xnst")
    rbf16(p, 52, 52)
    p.e(f"v_add_f32 v52, {f2u(1e-5):#x}, v52")
    rbf16(p, 52, 52)
    p.e("v_sqrt_f32 v52, v52")
    rbf16(p, 52, 52)
    p.e(f"""v_rcp_f32 v52, v52
    v_lshlrev_b32 v53, 2, v{vrow}
    v_cmp_lt_u32 vcc, 7, v0
    v_mov_b32 v54, {BIG}
    v_cndmask_b32 v53, v53, v54, vcc
    s_lshl_b32 s{t+3}, s2, 5
    s_add_u32 s{t+3}, s{t+3}, {CV}
    s_cmp_eq_u32 s{S_WAVE}, 0
    s_cselect_b32 s{t+3}, s{t+3}, {BIG}
    """)
    p.vmem(f"buffer_store_dword v52, v53, {WS}, s{t+3} offen {SC}", "xnst")

V_TRF = 16
V_TRA = 32
def tr_issue(p):
    t = T
    p.e(f"""
    s_mul_i32 s{S_TRU}, s2, 3
    s_add_u32 s{S_TRU}, s{S_TRU}, s{S_WAVE}
    s_cmp_lt_u32 s{S_WAVE}, 3
    s_cselect_b32 s{S_TRU}, s{S_TRU}, 1000
    s_mul_i32 s{S_TRS}, s{S_TRU}, 6554
    s_lshr_b32 s{S_TRS}, s{S_TRS}, 16
    s_mul_i32 s{S_TRC}, s{S_TRS}, 10
    s_sub_u32 s{S_TRC}, s{S_TRU}, s{S_TRC}
    s_cmp_lt_u32 s{S_TRS}, 54
    s_cselect_b32 s{SRD_WT}, s{S_W2}, s{S_WO}
    s_cselect_b32 s{SRD_WT+1}, s{S_W2+1}, s{S_WO+1}
    s_mov_b32 s{SRD_WT+2}, {640*1280}
    s_cmov_b32 s{SRD_WT+2}, {1728*1280}
    s_mov_b32 s{SRD_WT+3}, 0x00020000
    s_cselect_b32 s{t}, 0, 54
    s_sub_u32 s{t}, s{S_TRS}, s{t}
    s_mul_i32 s{t}, s{t}, {32*1280}
    s_lshl_b32 s{t+1}, s{S_TRC}, 7
    s_add_u32 s{t}, s{t}, s{t+1}
    s_cmp_lt_u32 s{S_TRU}, 740
    s_cselect_b32 s{t}, s{t}, {BIG}
    v_lshrrev_b32 v56, 3, v0
    v_mul_u32_u24 v56, 1280, v56
    v_and_b32 v57, 7, v0
    v_lshl_add_u32 v56, v57, 4, v56
    s_add_u32 s{S_TRL}, s{S_M0W}, {L_TR}
    """)
    for q in range(4):
        p.e(f"s_add_u32 m0, s{S_TRL}, {q*1024}\ns_add_u32 s{t+1}, s{t}, {q*8*1280}")
        p.vmem(f"buffer_load_dwordx4 v56, s[{SRD_WT}:{SRD_WT+3}], s{t+1} offen lds", "trd")
    p.e(f"""
    v_lshrrev_b32 v{V_TRA}, 4, v0
    v_lshlrev_b32 v{V_TRA}, 10, v{V_TRA}
    v_bfe_u32 v57, v0, 2, 2
    v_lshl_add_u32 v{V_TRA}, v57, 7, v{V_TRA}
    v_and_b32 v57, 3, v0
    v_lshl_add_u32 v{V_TRA}, v57, 3, v{V_TRA}
    v_add_u32 v{V_TRA}, s{S_TRL}, v{V_TRA}
    """)

def tr_finish():
    F = []
    t = T + 2
    F.append((0, lambda p: p.wait_vm("trd")))
    for ct in range(4):
        b = V_TRF + 4 * ct
        F.append((1, lambda p, b=b, ct=ct: p.lds(f"ds_read_b64_tr_b16 v[{b}:{b+1}], v{V_TRA} offset:{ct*32}", f"trr{ct}")))
        F.append((1, lambda p, b=b, ct=ct: p.lds(f"ds_read_b64_tr_b16 v[{b+2}:{b+3}], v{V_TRA} offset:{ct*32+512}", f"trr{ct}")))
    for ct in range(4):
        b = V_TRF + 4 * ct
        seq = f"""s_lshl_b32 s{t}, s{S_TRC}, 2
        s_add_u32 s{t}, s{t}, {ct}
        s_mul_i32 s{t+1}, s{t}, 13108
        s_lshr_b32 s{t+1}, s{t+1}, 16
        s_mul_i32 s{t+2}, s{t+1}, 5
        s_sub_u32 s{t}, s{t}, s{t+2}
        s_mul_i32 s{t+1}, s{t+1}, 74
        s_add_u32 s{t+1}, s{t+1}, s{S_TRS}
        s_mul_i32 s{t+1}, s{t+1}, 5
        s_add_u32 s{t+1}, s{t+1}, s{t}
        s_lshl_b32 s{t+1}, s{t+1}, 10
        s_add_u32 s{t+1}, s{t+1}, {W2T}""".split("\n")
        for s in seq: F.append((1, lambda p, s=s: p.e(s)))
        F.append((2, lambda p: p.e(f"s_cmp_lt_u32 s{S_TRU}, 740\ns_cselect_b32 s{t+1}, s{t+1}, {BIG}")))
        def st(p, b=b, ct=ct):
            p.wait_lg(f"trr{ct}")
            p.vmem(f"buffer_store_dwordx4 v[{b}:{b+3}], v{V_LIN}, {WS}, s{t+1} offen {SC}", "trst")
        F.append((1, st))
    return F

def p1_dma(p, sl, qs=range(4)):
    slot = sl % 8
    for q in qs:
        if sl < 10:
            p.e(f"s_add_u32 m0, s{S_M0W}, {slot*16384 + q*1024}\ns_add_u32 s{S_WOFF}, s{S_W1B}, {(64*sl + 4*q)*3840}")
            p.vmem(f"buffer_load_dwordx4 v{V_DW1}, s[{SRD_WQKV}:{SRD_WQKV+3}], s{S_WOFF} offen lds", f"W{sl}")
        else:
            j = (sl - 10) % 5
            b = S_P0B if sl < 15 else S_P1B
            p.e(f"s_add_u32 m0, s{S_M0W}, {slot*16384 + q*1024}\ns_add_u32 s{S_WOFF}, s{b}, {(128*j + 8*q)*3456}")
            p.vmem(f"buffer_load_dwordx4 v{V_DW2}, s[{SRD_W1}:{SRD_W1+3}], s{S_WOFF} offen lds", f"W{sl}")

def p1_bias_load(p):
    t = T
    p.e(f"""s_and_b32 s{t}, s{S_WAVE}, 1
    s_lshl_b32 s{t}, s{t}, 6
    v_add_u32 v119, s{t}, v0
    v_lshlrev_b32 v117, 1, v119
    s_lshl_b32 s{t+1}, s{S_NB}, 8""")
    p.vmem(f"buffer_load_ushort v118, v117, s[{SRD_B1}:{SRD_B1+3}], s{t+1} offen", "b1")

def p1_setup2(p):
    t = T
    p.e(f"""
    v_lshlrev_b32 v115, 6, v110
    v_lshl_add_u32 v115, v112, 5, v115
    v_lshrrev_b32 v116, 1, v111
    v_and_b32 v117, 1, v111
    v_lshl_add_u32 v116, v117, 1, v116
    v_lshl_add_u32 v117, v116, 3, v115
    v_lshl_add_u32 v116, v111, 3, v115
    v_lshrrev_b32 v115, 5, v0
    v_lshl_add_u32 v{V_T2}, v115, 10, v117
    v_add_u32 v{V_T2H}, 0x10000, v{V_T2}
    s_cmp_lt_u32 s{S_NB}, 10
    s_cselect_b64 vcc, -1, 0
    v_cndmask_b32 v116, v116, v117, vcc
    v_lshl_add_u32 v{V_T1}, v115, 11, v116
    v_add_u32 v{V_T1H}, 0x10000, v{V_T1}
    v_and_b32 v116, 31, v0
    v_lshlrev_b32 v117, 5, v116
    v_lshl_add_u32 v117, v115, 4, v117
    v_cndmask_b32 v{V_EOFF}, v117, v{V_LIN}, vcc
    s_mul_i32 s{t}, s{S_RT}, 160
    s_lshl_b32 s{t+1}, s{S_NB}, 4
    s_add_u32 s{t}, s{t}, s{t+1}
    s_lshl_b32 s{t}, s{t}, 9
    s_add_u32 s{t}, s{t}, {QK}
    s_mul_i32 s{t+1}, s{S_RT}, 40960
    s_sub_u32 s{t+2}, s{S_NB}, 10
    s_lshl_b32 s{t+2}, s{t+2}, 12
    s_add_u32 s{t+1}, s{t+1}, s{t+2}
    s_add_u32 s{t+1}, s{t+1}, {VT}
    s_cmp_lt_u32 s{S_NB}, 10
    s_cselect_b32 s{t}, s{t}, s{t+1}
    s_mov_b32 s{t+1}, 20480
    s_cmov_b32 s{t+1}, 1024
    s_mov_b32 s{t+2}, 1024
    s_cmov_b32 s{t+2}, 2048
    s_cmp_lt_u32 s{S_NB}, 15
    s_cselect_b32 s{S_E}, s{t}, {BIG}
    s_add_u32 s{S_E+1}, s{S_E}, s{t+1}
    s_add_u32 s{S_E+2}, s{S_E}, s{t+2}
    s_add_u32 s{S_E+3}, s{S_E+1}, s{t+2}
    s_add_u32 s{S_E+4}, s{S_E+2}, s{t+2}
    s_add_u32 s{S_E+5}, s{S_E+3}, s{t+2}
    s_add_u32 s{S_E+6}, s{S_E+4}, s{t+2}
    s_add_u32 s{S_E+7}, s{S_E+5}, s{t+2}
    s_cmp_lt_u32 s{S_NB}, 5
    s_cselect_b32 s{S_SCALE}, {f2u(20**-0.5 * math.log2(math.e)):#x}, 1.0
    s_mul_i32 s{t}, s{S_RT}, 216
    s_lshl_b32 s{t+1}, s{S_NB}, 4
    s_add_u32 s{t}, s{t}, s{t+1}
    s_lshl_b32 s{t}, s{t}, 9
    s_add_u32 s{t}, s{t}, {HH}
    s_cmp_lt_u32 s{S_NB}, 14
    s_cselect_b32 s{S_H0}, s{t}, {BIG}
    s_add_u32 s{t}, s{t}, 4096
    s_cmp_lt_u32 s{S_NB}, 13
    s_cselect_b32 s{S_H1}, s{t}, {BIG}
    s_mul_i32 s{S_XB}, s{S_RT}, 40960
    v_mov_b32 v{V_K1}, {f2u(-2*0.7978845608028654*math.log2(math.e)*0.044715):#x}
    v_mov_b32 v{V_K2}, {f2u(-2*0.7978845608028654*math.log2(math.e)):#x}
    v_lshlrev_b32 v{V_BADDR}, 5, v115
    v_add_u32 v{V_BADDR}, {L_BIAS}, v{V_BADDR}
    v_lshlrev_b32 v119, 2, v119
    v_add_u32 v119, {L_BIAS}, v119
    v_lshlrev_b32 v116, 2, v116
    """)
    p.wait_vm("b1")
    p.e("v_lshlrev_b32 v118, 16, v118")
    p.lds("ds_write_b32 v119, v118", "bw")

S_XO = 83
def p1_xload(p, s):
    if s % 4 == 0:
        p.e(f"s_add_u32 s{S_XO}, s{S_XB}, {XN + (s//4)*4096}")
    p.vmem(f"buffer_load_dwordx4 a[{A_X+4*s}:{A_X+4*s+3}], v{V_LIN}, {WS}, s{S_XO} offen offset:{(s%4)*1024} {SC}", f"X{s}")

def wf(i): return WFPOOL[i % len(WFPOOL)]

def p1_reads(i):
    b = wf(i)
    if i < 160:
        s, tile = divmod(i, 4)
        sl = s // 4
        off = (sl % 8) * 16384 + (s % 4) * 4096 + tile * 256
        d2 = 1024; lo, hi = V_T1, V_T1H
    else:
        tau, s = divmod(i - 160, 40)
        sl = 10 + 5 * (tau // 2) + s // 8
        off = (sl % 8) * 16384 + (s % 8) * 2048 + (tau % 2) * 256
        d2 = 512; lo, hi = V_T2, V_T2H
    base = lo
    if off >= 65536:
        base = hi; off -= 65536
    return [f"ds_read_b64_tr_b16 v[{b}:{b+1}], v{base} offset:{off}",
            f"ds_read_b64_tr_b16 v[{b+2}:{b+3}], v{base} offset:{off+d2}"]

def p1_mfma(i, vtype):
    b = wf(i)
    if i < 160:
        s, tile = divmod(i, 4); acc = V_ACC1 + 16 * tile
    else:
        tau, s = divmod(i - 160, 40); acc = V_ACC2 + 16 * (tau % 2); vtype = False
    x = f"a[{A_X+4*s}:{A_X+4*s+3}]"; w = f"v[{b}:{b+3}]"
    c = "0" if s == 0 else f"v[{acc}:{acc+15}]"
    a_, b_ = (x, w) if vtype else (w, x)
    return f"v_mfma_f32_32x32x16_bf16 v[{acc}:{acc+15}], {a_}, {b_}, {c}"

def qkv_epilogue():
    F = []
    for tile in range(4):
        acc = V_ACC1 + 16 * tile
        for u in range(2):
            tb = V_TMP + 4 * ((2 * tile + u) % 2)
            for e in range(4):
                r = acc + 8 * u + 2 * e
                F.append((1, lambda p, r=r: p.e(f"v_mul_f32 v{r}, s{S_SCALE}, v{r}")))
                F.append((1, lambda p, r=r: p.e(f"v_mul_f32 v{r+1}, s{S_SCALE}, v{r+1}")))
                F.append((1, lambda p, r=r, d=tb+e: p.e(f"v_cvt_pk_bf16_f32 v{d}, v{r}, v{r+1}")))
            F.append((1, lambda p, tb=tb, k=2*tile+u: p.vmem(f"buffer_store_dwordx4 v[{tb}:{tb+3}], v{V_EOFF}, {WS}, s{S_E+k} offen {SST}", "qkvst")))
    return F

def gelu_epilogue(tau):
    F = []
    acc = V_ACC2 + 16 * (tau % 2)
    for q in range(4):
        off = (32 * tau + 16 * (q >> 1) + 4 * (q & 1)) * 4
        F.append((1, lambda p, q=q, off=off: p.lds(f"ds_read_b128 v[{V_BIAS+4*q}:{V_BIAS+4*q+3}], v{V_BADDR} offset:{off}", f"bias{tau}_{q}")))
    for u in range(2):
        pk = V_TMP + 8 + 4 * u
        for e in range(4):
            r0 = acc + 8 * u + 2 * e; b0 = V_BIAS + 8 * u + 2 * e
            t0, t1 = V_TMP + 16, V_TMP + 17
            if e % 2 == 0:
                F.append((0, lambda p, q=2*u+e//2: p.wait_lg(f"bias{tau}_{q}")))
            seq = [
                f"v_fma_f32 v{r0}, v{r0}, v{V_C}, v{b0}", f"v_fma_f32 v{r0+1}, v{r0+1}, v{V_C}, v{b0+1}",
                f"v_mul_f32 v{t0}, v{r0}, v{r0}", f"v_mul_f32 v{t1}, v{r0+1}, v{r0+1}",
                f"v_fma_f32 v{t0}, v{t0}, v{V_K1}, v{V_K2}", f"v_fma_f32 v{t1}, v{t1}, v{V_K1}, v{V_K2}",
                f"v_mul_f32 v{t0}, v{t0}, v{r0}", f"v_mul_f32 v{t1}, v{t1}, v{r0+1}",
                f"v_exp_f32 v{t0}, v{t0}", f"v_exp_f32 v{t1}, v{t1}",
                f"v_add_f32 v{t0}, 1.0, v{t0}", f"v_add_f32 v{t1}, 1.0, v{t1}",
                f"v_rcp_f32 v{t0}, v{t0}", f"v_rcp_f32 v{t1}, v{t1}",
                f"v_mul_f32 v{t0}, v{t0}, v{r0}", f"v_mul_f32 v{t1}, v{t1}, v{r0+1}",
                f"v_cvt_pk_bf16_f32 v{pk+e}, v{t0}, v{t1}"]
            for s in seq:
                F.append((2 if s.split()[0] in TRANS else 1, lambda p, s=s: p.e(s)))
        sb = S_H0 if tau < 2 else S_H1
        F.append((1, lambda p, pk=pk, sb=sb, off=(tau % 2) * 2048 + u * 1024:
                  p.vmem(f"buffer_store_dwordx4 v[{pk}:{pk+3}], v{V_LIN}, {WS}, s{sb} offen offset:{off} {SST}", "hst")))
    return F

def run_stream(p, lo, hi, total, mfma, reads, pre_mfma, pre_read, post, fillers, la):
    cur, ci, budget, per = [], 0, 0.0, 0.0
    for i in range(lo, hi):
        if i in fillers:
            while ci < len(cur):
                cur[ci][1](p); ci += 1
            cur, span = fillers[i]
            ci = 0; budget = 0.0
            per = sum(w for w, _ in cur) / span
        p.wait_lg(("wf", i))
        for f in pre_mfma.get(i, []): f(p)
        p.e(mfma(i))
        j = i + la
        if j < total:
            for f in pre_read.get(j, []): f(p)
            for r in reads(j): p.lds(r, ("wf", j))
        for f in post.get(i, []): f(p)
        budget += per
        while ci < len(cur) and (budget >= cur[ci][0] - 1e-9):
            budget -= cur[ci][0]
            cur[ci][1](p); ci += 1
    while ci < len(cur):
        cur[ci][1](p); ci += 1

def bslot(n):
    if n < 24: return 160 + 4 * n
    if n < 64: return 4 * (n - 24)
    return bslot(n - 64)
S_BCUR = 90
S_NT4, S_MB4 = 91, 92
def b_setup(p):
    t = T
    p.e(f"""
    s_lshl_b32 s{S_MB4}, s{S_XCD}, 2
    s_lshr_b32 s{t}, s{S_U}, 3
    s_add_u32 s{S_MB4}, s{S_MB4}, s{t}
    s_and_b32 s{S_NT4}, s{S_U}, 7
    s_mul_i32 s{t}, s{S_WAVE}, 14
    s_cmp_eq_u32 s{S_WAVE}, 3
    s_cselect_b32 s{t+1}, 1, 0
    s_sub_u32 s{t}, s{t}, s{t+1}
    s_mul_i32 s{t+2}, s{S_NT4}, 74
    s_add_u32 s{S_BB}, s{t+2}, s{t}
    s_mul_i32 s{S_BB}, s{S_BB}, 5120
    s_add_u32 s{S_BB}, s{S_BB}, {W2T}
    s_mul_i32 s{t}, s{S_WAVE}, 5
    s_add_u32 s{S_BB+1}, s{t+2}, s{t}
    s_add_u32 s{S_BB+1}, s{S_BB+1}, 54
    s_mul_i32 s{S_BB+1}, s{S_BB+1}, 5120
    s_add_u32 s{S_BB+1}, s{S_BB+1}, {W2T}
    """)
def b_load(p, n):
    base, m = (S_BB, n) if n < 70 else (S_BB + 1, n - 70)
    if m % 4 == 0 or n == 65:
        p.e(f"s_add_u32 s{S_BCUR}, s{base}, {(m//4)*4096}")
        if 65 <= n < 70:
            p.e(f"s_cmp_lt_u32 s{S_WAVE}, 2\ns_cselect_b32 s{S_BCUR}, s{S_BCUR}, {BIG}")
    a = bslot(n)
    p.vmem(f"buffer_load_dwordx4 a[{a}:{a+3}], v{V_LIN}, {WS}, s{S_BCUR} offen offset:{(m%4)*1024} {SC}", ("B", n))

VQ, VDV = 8, 24
VOM, VOT, VKA, VKT, VVA, VONE = 29, 30, 31, 32, 33, 34
VKB, VVB, VML, VMX = 128, 144, 168, 176
VS, VP, VPS, VO = 64, 112, 180, 196
VPOLL = 120
S_TRIP = [16, 18, 28, 30, 32, 34, 36, 38, 84, 86, 94, 96, 42, 62, 64, 66]
S_HD, S_QB, S_KMIN, S_C0, S_ODD, S_QT = 68, 69, 70, 71, 72, 73
S_AM = 74
S_VX = 58

def attn_ids(p):
    t = T
    p.e(f"""
    s_lshl_b32 s{S_HD}, s{S_XCD}, 2
    s_and_b32 s{t}, s{S_U}, 3
    s_add_u32 s{S_HD}, s{S_HD}, s{t}
    s_lshr_b32 s{S_QB}, s{S_U}, 2
    s_and_b32 s{S_ODD}, s{S_HD}, 1
    s_lshr_b32 s{S_C0}, s{S_HD}, 1
    s_mul_i32 s{S_C0}, s{S_C0}, 5
    s_lshl_b32 s{t}, s{S_ODD}, 1
    s_add_u32 s{S_C0}, s{S_C0}, s{t}
    """)

def wgid_of(mb, nb):
    xcd = (mb >> 3) | ((nb >> 2) << 1); u = (mb & 7) | ((nb & 3) << 3)
    return u * 8 + xcd

def qkv_poll_setup(p):
    t = T
    p.e(f"""
    v_and_b32 v40, 3, v0
    s_lshl_b32 s{t}, s{S_QB}, 1
    s_sub_u32 s{t}, s{t}, 2
    v_add_u32 v40, s{t}, v40
    v_max_i32 v40, 0, v40
    v_lshrrev_b32 v41, 2, v0
    v_min_u32 v41, 14, v41
    v_lshrrev_b32 v42, 3, v40
    v_lshrrev_b32 v43, 2, v41
    v_lshl_add_u32 v42, v43, 1, v42
    v_and_b32 v40, 7, v40
    v_and_b32 v41, 3, v41
    v_lshl_add_u32 v40, v41, 3, v40
    v_lshl_add_u32 v40, v40, 3, v42
    v_lshlrev_b32 v40, 7, v40
    s_mov_b32 s{S_PB}, {F_QKV}
    """)

def attn_loads():
    F = []
    t = T
    E = lambda s: F.extend((1, lambda p, x=x: p.e(x)) for x in s.strip().split("\n"))
    E(f"""s_lshl_b32 s{t}, s{S_QB}, 3
    s_lshl_b32 s{t+1}, s{S_WAVE}, 2
    s_add_u32 s{t}, s{t}, s{t+1}
    s_sub_u32 s{t+1}, s{t}, 8""")
    F.append((2, lambda p: p.e(f"s_cmp_lt_u32 s{t}, 8\ns_cselect_b32 s{t}, s{t}, s{t+1}")))
    E(f"""s_mul_i32 s{t+1}, s{t}, 160
    s_add_u32 s{t+1}, s{t+1}, s{S_C0}
    s_add_u32 s{t+1}, s{t+1}, 80
    s_lshl_b32 s{t+1}, s{t+1}, 9
    s_add_u32 s{t+1}, s{t+1}, {QK}
    s_lshl_b32 s{t+2}, s{S_WAVE}, 13""")
    for k in range(4):
        for i in range(2):
            def f(p, k=k, i=i):
                p.e(f"s_add_u32 m0, s{t+2}, {L_K + k*2048 + i*1024}\ns_add_u32 s{t+3}, s{t+1}, {k*81920 + i*1024}")
                p.vmem(f"buffer_load_dwordx4 v{V_LIN}, {WS}, s{t+3} offen {SC} lds", "KV")
            F.append((3, f))
    for i in range(5):
        E(f"""v_add_u32 v2, {64*i}, v0
        v_mul_u32_u24 v3, 1639, v2
        v_lshrrev_b32 v3, 16, v3
        v_mul_u32_u24 v4, 40, v3
        v_sub_u32 v2, v2, v4
        v_mul_u32_u24 v3, 20480, v3
        v_lshl_add_u32 v{VDV+i}, v2, 4, v3""")
    E(f"""s_mul_i32 s{t+1}, s{t}, 40960
    s_mul_i32 s{t+3}, s{S_HD}, 640
    s_add_u32 s{t+1}, s{t+1}, s{t+3}
    s_add_u32 s{t+1}, s{t+1}, {VT}
    s_mul_i32 s{t+2}, s{S_WAVE}, 5120""")
    for i in range(5):
        def f(p, i=i):
            p.e(f"s_add_u32 m0, s{t+2}, {L_V + i*1024}\ns_nop 0")
            p.vmem(f"buffer_load_dwordx4 v{VDV+i}, {WS}, s{t+1} offen {SC} lds", "KV")
        F.append((3, f))
    E(f"""s_lshl_b32 s{S_QT}, s{S_QB}, 3
    s_lshl_b32 s{t}, s{S_WAVE}, 1
    s_add_u32 s{S_QT}, s{S_QT}, s{t}
    s_mul_i32 s{t}, s{S_QT}, 160
    s_add_u32 s{t}, s{t}, s{S_C0}
    s_lshl_b32 s{t}, s{t}, 9
    s_add_u32 s{t}, s{t}, {QK}
    s_add_u32 s{t+1}, s{t}, 81920
    s_lshl_b32 s{t+2}, s{S_ODD}, 9
    v_add_u32 v{VOM}, s{t+2}, v{V_LIN}
    v_and_b32 v2, 31, v0
    v_lshlrev_b32 v2, 4, v2""")
    F.append((2, lambda p: p.e(f"s_cmp_eq_u32 s{S_ODD}, 0\ns_cselect_b32 s{t+2}, 1024, 8")))
    E(f"""v_add_u32 v{VKT}, s{t+2}, v2
    v_mov_b32 v3, {BIG}
    v_cmp_lt_u32 vcc, 31, v0
    v_cndmask_b32 v{VOT}, v{VKT}, v3, vcc""")
    for qi in range(2):
        b = VQ + 8 * qi
        F.append((1, lambda p, b=b, qi=qi: p.vmem(f"buffer_load_dwordx4 v[{b}:{b+3}], v{VOM}, {WS}, s{t+qi} offen {SC}", "Q")))
        F.append((1, lambda p, b=b, qi=qi: p.vmem(f"buffer_load_dwordx2 v[{b+4}:{b+5}], v{VOT}, {WS}, s{t+qi} offen {SC}", "Q")))
    E(f"""v_mov_b32 v2, 1.0
    v_cndmask_b32 v{VONE}, v2, 0, vcc
    v_mov_b32 v2, 0x3f80
    v_cndmask_b32 v{VQ+6}, v2, 0, vcc
    v_mov_b32 v{VQ+7}, 0
    v_mov_b32 v{VQ+14}, v{VQ+6}
    v_mov_b32 v{VQ+15}, 0
    v_mov_b32 v{VKB+7}, 0x3f80
    v_mov_b32 v{VKB+15}, 0x3f80
    s_lshl_b32 s{t}, s{S_WAVE}, 12
    s_add_u32 s{t}, s{t}, {L_K}
    v_add_u32 v{VKA}, s{t}, v{VOM}
    v_add_u32 v{VKT}, s{t}, v{VKT}
    v_and_b32 v2, 31, v0
    v_bfe_u32 v3, v0, 2, 1
    v_bfe_u32 v4, v0, 3, 1
    v_and_b32 v5, 3, v0
    v_lshl_add_u32 v5, v3, 3, v5
    v_lshl_add_u32 v5, v4, 2, v5
    s_lshl_b32 s{t}, s{S_ODD}, 2
    v_add_u32 v5, s{t}, v5
    s_lshl_b32 s{t}, s{S_ODD}, 4
    v_subrev_u32 v4, s{t}, v2
    v_cmp_gt_u32 vcc, 16, v2
    v_cndmask_b32 v5, v4, v5, vcc
    v_lshlrev_b32 v5, 5, v5
    v_lshrrev_b32 v3, 5, v0
    v_lshl_add_u32 v5, v3, 4, v5
    s_mul_i32 s{t}, s{S_WAVE}, {4*640}
    s_add_u32 s{t}, s{t}, {L_V}
    v_add_u32 v{VVA}, s{t}, v5
    s_lshl_b32 s{t}, s{S_WAVE}, 1
    s_sub_u32 s{t}, 8, s{t}""")
    F.append((2, lambda p: p.e(f"s_cmp_eq_u32 s{S_QB}, 0\ns_cselect_b32 s{S_KMIN}, s{t}, 0")))
    for kt in range(8):
        F.append((2, lambda p, kt=kt: p.e(f"s_cmp_gt_u32 s{S_KMIN}, {kt}\ns_cselect_b32 s{S_AM+kt}, 0x3f80f149, 1.0")))
    E("v_lshlrev_b32 v3, 2, v3\nv_sub_u32 v4, v2, v3")
    for r in range(16):
        E(f"v_cmp_le_i32 s[{S_TRIP[r]}:{S_TRIP[r]+1}], {8*(r>>2) + (r&3)}, v4")
    E("v_mov_b32 v5, 0xffff\nv_mov_b32 v6, 0xffff0000")
    for e in range(8):
        a, b = S_TRIP[2*e], S_TRIP[2*e+1]
        E(f"v_cndmask_b32 v2, 0, v5, s[{a}:{a+1}]\nv_cndmask_b32 v3, 0, v6, s[{b}:{b+1}]\nv_or_b32 v{VML+e}, v2, v3")
    for i in range(24): E(f"v_mov_b32 v{VVB+i}, 0x3f803f80")
    E(f"v_mov_b32 v{VMX}, 0xff7fffff\nv_mov_b32 v{VMX+1}, 0xff7fffff\ns_mov_b32 s{S_VX}, 0xfffff\ns_mov_b32 s{S_VX+1}, 0xfffff")
    return F

def attn_main(p, extraA, mid, extraB):
    t = T
    order = [0, 8, 1, 9, 2, 3, 4, 5, 6, 7]
    kbuf = {kt: VKB + 8 * (n % 2) for n, kt in enumerate(order)}
    vbuf = {kt: VVB + 8 * (n % 3) for n, kt in enumerate(order)}
    def kread(kt, ps):
        b = kbuf[kt]
        p.lds(f"ds_read_b128 v[{b}:{b+3}], v{VKA} offset:{kt*2048}", ("K", kt, ps))
        p.lds(f"ds_read_b64 v[{b+4}:{b+5}], v{VKT} offset:{kt*2048}", ("K", kt, ps))
        p.e(f"v_mov_b32 v{b+6}, " + (f"s{S_AM+kt}" if kt < 8 else "1.0"))
    def vread(kt):
        b = vbuf[kt]
        p.e(f"s_mov_b64 exec, s[{S_VX}:{S_VX+1}]")
        p.lds(f"ds_read_b128 v[{b}:{b+3}], v{VVA} offset:{kt*1280}", ("V", kt))
        p.lds(f"ds_read_b128 v[{b+4}:{b+7}], v{VVA} offset:{kt*1280+640}", ("V", kt))
        p.e("s_mov_b64 exec, -1")
    units = [("m", 0, 0, 8), ("f", 1, 8), ("f", 0, 1), ("m", 1, 1, 9)] + [("f", q, kt) for kt in range(2, 8) for q in range(2)]
    qk = [[(u[1], u[2]), (u[1], u[3])] if u[0] == "m" else [(u[1], u[2])] for u in units]
    sb = []; n = 0
    for ops in qk:
        sb.append([VS + 16 * ((n + i) % 3) for i in range(len(ops))]); n += len(ops)
    def qk_mfmas(ui, ps):
        L = []
        for (q, kt), s in zip(qk[ui], sb[ui]):
            b = kbuf[kt]; qb_ = VQ + 8 * q
            def f1(p, kt=kt, s=s, b=b, qb_=qb_):
                p.wait_lg(("K", kt, ps))
                p.e(f"v_mfma_f32_32x32x16_bf16 v[{s}:{s+15}], v[{b}:{b+3}], v[{qb_}:{qb_+3}], 0")
            def f2(p, s=s, b=b, qb_=qb_):
                p.e(f"v_mfma_f32_32x32x16_bf16 v[{s}:{s+15}], v[{b+4}:{b+7}], v[{qb_+4}:{qb_+7}], v[{s}:{s+15}]")
            L += [f1, f2]
        return L
    last_use = {}
    for ui, ops in enumerate(qk):
        for (q, kt) in ops: last_use[kt] = ui
    def kreads_after(ui, ps):
        return [(lambda p, kt=kt: kread(kt, ps)) for n, kt in enumerate(order) if n >= 2 and last_use[order[n - 2]] == ui]
    def merge(ui):
        f, l = sb[ui]
        return [f"v_cndmask_b32 v{l+r}, v{f+r}, v{l+r}, s[{S_TRIP[r]}:{S_TRIP[r]+1}]" for r in range(16)]
    def interleave(valu, mf):
        tot = sum(w for w, _ in valu); acc = 0.0; k = 0
        for w, f in valu:
            while k < len(mf) and acc >= tot * k / max(1, len(mf)) - 1e-9:
                mf[k](p); k += 1
            f(p); acc += w
        while k < len(mf):
            mf[k](p); k += 1
    E = lambda s: (2 if s.split()[0] in TRANS else 1, lambda p, s=s: p.e(s))
    kread(order[0], "A"); kread(order[1], "A")
    for f in qk_mfmas(0, "A"): f(p)
    for f in kreads_after(0, "A"): f(p)
    for ui, u in enumerate(units):
        valu = []
        s = sb[ui][-1]
        if u[0] == "m": valu += [E(x) for x in merge(ui)]
        m = VMX + u[1]
        valu += [E(f"v_max3_f32 v{m}, v{s+2*e}, v{s+2*e+1}, v{m}") for e in range(8)]
        mf = []
        if ui + 1 < len(units): mf = qk_mfmas(ui + 1, "A") + kreads_after(ui + 1, "A")
        for f in mf: f(p)
        for f in extraA.get(ui, []): f(p)
        for w, f in valu: f(p)
    stamp(p, 9)
    kread(order[0], "B"); kread(order[1], "B")
    vread(order[0]); vread(order[1])
    mid(p)
    for q in range(2):
        m = VMX + q; a = VMX + 2; qt = VQ + 8 * q + 4
        p.e(f"""
        v_mov_b32 v{a}, v{m}
        v_permlane32_swap_b32 v{a}, v{m}
        v_max_f32 v{m}, v{a}, v{m}
        v_mul_f32 v{m}, -v{m}, v{VONE}
        v_cvt_pk_bf16_f32 v{qt+2}, v{VONE}, v{m}
        v_and_b32 v{a}, 0xffff0000, v{qt+2}
        v_sub_f32 v{a}, v{m}, v{a}
        v_cvt_pk_bf16_f32 v{qt+3}, v{a}, 0
        """)
    vlast = {}; pv = []
    for ui, u in enumerate(units):
        kts = [u[2], u[3]] if u[0] == "m" else [u[2]]
        pv.append(kts)
        for kt in kts: vlast[kt] = ui
    first_pv = {0: True, 1: True}
    def pv_mfmas(ui):
        u = units[ui]; q = u[1]; o = VO + 16 * q
        L = []
        srcs = [VPS, VPS + 8] if u[0] == "m" else [VP + 8 * (ui % 2)]
        for kt, pb in zip(pv[ui], srcs):
            for g in range(2):
                c = "0" if first_pv[q] else f"v[{o}:{o+15}]"
                first_pv[q] = False
                vb = vbuf[kt] + 4 * g
                def f(p, kt=kt, vb=vb, pb=pb + 4 * g, c=c, o=o):
                    p.wait_lg(("V", kt))
                    p.e(f"v_mfma_f32_32x32x16_bf16 v[{o}:{o+15}], v[{vb}:{vb+3}], v[{pb}:{pb+3}], {c}")
                L.append(f)
        return L
    def vreads_after(ui):
        return [(lambda p, kt=kt: vread(kt)) for n, kt in enumerate(order) if n >= 3 and vlast[order[n - 3]] == ui]
    for f in qk_mfmas(0, "B"): f(p)
    for f in kreads_after(0, "B"): f(p)
    vread(order[2])
    for ui, u in enumerate(units):
        s = sb[ui][-1]; pb = VP + 8 * (ui % 2)
        pre = [E(x) for x in merge(ui)] if u[0] == "m" else []
        valu = []
        for e in range(8):
            valu += [E(f"v_exp_f32 v{s+2*e}, v{s+2*e}"), E(f"v_exp_f32 v{s+2*e+1}, v{s+2*e+1}")]
            if e > 0: valu.append(E(f"v_cvt_pk_bf16_f32 v{pb+e-1}, v{s+2*e-2}, v{s+2*e-1}"))
        valu.append(E(f"v_cvt_pk_bf16_f32 v{pb+7}, v{s+14}, v{s+15}"))
        if u[0] == "m":
            for e in range(8):
                valu.append(E(f"v_bfi_b32 v{VPS+e}, v{VML+e}, 0, v{pb+e}"))
                valu.append(E(f"v_and_b32 v{VPS+8+e}, v{VML+e}, v{pb+e}"))
        mf = []
        if ui > 0: mf += pv_mfmas(ui - 1) + vreads_after(ui - 1)
        nxt = []
        if ui + 1 < len(units): nxt = qk_mfmas(ui + 1, "B") + kreads_after(ui + 1, "B")
        nxt = nxt + extraB.get(ui, [])
        if u[0] == "m":
            interleave(pre, mf); interleave(valu, nxt)
        else:
            interleave(valu, mf + nxt)
    for f in pv_mfmas(len(units) - 1): f(p)
    stamp(p, 10)
    p.e(f"""
    s_mul_i32 s{t}, s{S_QT}, 80
    s_add_u32 s{t}, s{t}, s{S_C0}
    s_lshl_b32 s{t}, s{t}, 9
    s_add_u32 s{t}, s{t}, {OO}
    s_add_u32 s{t+1}, s{t}, 40960
    """)
    for q in range(2):
        o = VO + 16 * q; a, b = VMX + 2, VMX + 3
        p.e(f"v_mov_b32 v{a}, v{o+8}\nv_mov_b32 v{b}, v{o+8}\nv_permlane32_swap_b32 v{a}, v{b}\nv_rcp_f32 v{b}, v{b}")
        for r in range(12): p.e(f"v_mul_f32 v{o+r}, v{o+r}, v{b}")
        pk = VP + 8 * q
        for e in range(6): p.e(f"v_cvt_pk_bf16_f32 v{pk+e}, v{o+2*e}, v{o+2*e+1}")
        p.vmem(f"buffer_store_dwordx4 v[{pk}:{pk+3}], v{VOM}, {WS}, s{t+q} offen {SC}", "ost")
        p.vmem(f"buffer_store_dwordx2 v[{pk+4}:{pk+5}], v{VOT}, {WS}, s{t+q} offen {SC}", "ost")

VAH, VAO = 24, 60
APOOL = [228 + 4 * i for i in range(7)] + [40 + 4 * i for i in range(5)]
VACC, VXR, VBR, VRED = 64, 144, 154, 164
S_AH, S_AO, S_ACUR = 60, 61, 83
VPOFF4, VPOLL4 = 28, 6
NS = 19
def p4_setup():
    L = []
    t = T + 4
    L.append(f"""v_lshrrev_b32 v1, 4, v0
    v_and_b32 v2, 15, v0
    v_lshlrev_b32 v3, 9, v1
    v_lshl_add_u32 v3, v2, 4, v3""")
    for k in range(4):
        L.append(f"""s_add_u32 s{t}, s{S_WAVE}, {k}
        s_and_b32 s{t}, s{t}, 3
        s_lshr_b32 s{t+1}, s{t}, 1
        s_and_b32 s{t}, s{t}, 1
        s_lshl_b32 s{t}, s{t}, 8
        s_mul_i32 s{t+2}, s{t+1}, 110592
        s_add_u32 s{t+2}, s{t+2}, s{t}
        v_add_u32 v{VAH+k}, s{t+2}, v3
        s_mul_i32 s{t+2}, s{t+1}, 40960
        s_add_u32 s{t+2}, s{t+2}, s{t}
        v_add_u32 v{VAO+k}, s{t+2}, v3""")
    L.append(f"""s_mul_i32 s{t}, s{S_WAVE}, 14
    s_cmp_eq_u32 s{S_WAVE}, 3
    s_cselect_b32 s{t+1}, 1, 0
    s_sub_u32 s{t}, s{t}, s{t+1}
    s_mul_i32 s{S_AH}, s{S_MB4}, {2*110592}
    s_lshl_b32 s{t+1}, s{t}, 11
    s_add_u32 s{S_AH}, s{S_AH}, s{t+1}
    s_add_u32 s{S_AH}, s{S_AH}, {HH}""")
    L.append(f"""s_mul_i32 s{t}, s{S_WAVE}, 5
    s_mul_i32 s{S_AO}, s{S_MB4}, {2*40960}
    s_lshl_b32 s{t+1}, s{t}, 11
    s_add_u32 s{S_AO}, s{S_AO}, s{t+1}
    s_add_u32 s{S_AO}, s{S_AO}, {OO}""")
    L.append(f"""s_lshr_b32 s{t}, s{S_MB4}, 1
    s_lshr_b32 s{t+1}, s{t}, 3
    s_and_b32 s{t}, s{t}, 7
    s_lshl_b32 s{t}, s{t}, 3
    s_add_u32 s{t}, s{t}, s{t+1}
    v_min_u32 v4, 13, v0
    v_lshrrev_b32 v5, 2, v4
    v_and_b32 v4, 3, v4
    v_lshlrev_b32 v4, 6, v4
    v_lshl_add_u32 v4, v5, 1, v4
    v_add_u32 v4, s{t}, v4
    v_lshlrev_b32 v{VPOFF4}, 7, v4
    s_mov_b32 s{S_PB}, {F_H}""")
    return [(lambda p, x=x: p.e(x)) for x in L]

def a_load(p, i, k):
    if k == 0:
        if i < 14:
            p.e(f"s_add_u32 s{S_ACUR}, s{S_AH}, {i*2048}")
            if i == 13: p.e(f"s_cmp_lt_u32 s{S_WAVE}, 2\ns_cselect_b32 s{S_ACUR}, s{S_ACUR}, {BIG}")
        else:
            p.e(f"s_add_u32 s{S_ACUR}, s{S_AO}, {(i-14)*2048}")
    b = APOOL[(4 * i + k) % 12]
    va = (VAH if i < 14 else VAO) + k
    p.vmem(f"buffer_load_dwordx4 v[{b}:{b+3}], v{va}, {WS}, s{S_ACUR} offen {SC}", ("A", i))

def phase4(p):
    t = T
    p.e(f"""
    v_lshrrev_b32 v1, 4, v0
    v_and_b32 v2, 15, v0
    s_lshl_b32 s{t}, s{S_MB4}, 6
    s_lshl_b32 s{t+1}, s{S_WAVE}, 4
    s_add_u32 s{t}, s{t}, s{t+1}
    v_add_u32 v4, s{t}, v2
    v_mul_u32_u24 v4, 1280, v4
    v_lshlrev_b32 v5, 3, v1
    v_add_u32 v4, v4, v5
    s_mul_i32 s{t+3}, s{S_NT4}, 160
    """)
    extra = {}
    def res(p, ct):
        p.vmem(f"buffer_load_dwordx2 v[{VXR+2*ct}:{VXR+2*ct+1}], v4, s[{SRD_X}:{SRD_X+3}], s{t+3} offen offset:{32*ct}", "res")
        p.vmem(f"buffer_load_dwordx2 v[{VBR+2*ct}:{VBR+2*ct+1}], v5, s[{SRD_B2}:{SRD_B2+3}], s{t+3} offen offset:{32*ct}", "res")
    for ct in range(5): extra.setdefault(13 + ct, []).append(lambda p, ct=ct: res(p, ct))
    nb = 64
    for i in range(1, 12):
        for k in range(3):
            if nb < 95 and (nb - 64) // 5 < i:
                extra.setdefault(i, []).append(lambda p, n=nb: b_load(p, n)); nb += 1
    assert nb == 95, nb
    def oflag(p):
        p.wait_vm("ost"); p.e("s_barrier"); flag_store(p, F_O)
        p.e(f"""v_and_b32 v1, 3, v0
        v_bfe_u32 v2, v0, 2, 3
        v_lshl_add_u32 v1, v1, 3, v2
        s_lshr_b32 s{t+4}, s{S_MB4}, 2
        s_lshl_b32 s{t+4}, s{t+4}, 5
        v_add_u32 v1, s{t+4}, v1
        v_lshlrev_b32 v{VPOFF4}, 7, v1
        s_mov_b32 s{S_PB}, {F_O}""")
    pre = {OPT.get("oflag", 3): [oflag]}
    pp = OPT.get("opoll", 10)
    extra.setdefault(pp, []).append(lambda p: poll_issue(p, [VPOFF4], S_PB, VPOLL4, "opoll"))
    pre.setdefault(12, []).append(lambda p: poll_check(p, [VPOFF4], S_PB, VPOLL4, "opoll"))
    for i in range(NS):
        if i in (1, 7, 14): stamp(p, 12 + i // 7 if i > 1 else 11 + 1 - 1 + 0) if False else None
        for f in pre.get(i, []): f(p)
        todo = [(lambda p, k=k, i=i: a_load(p, i + 2, k)) for k in range(4)] if i + 2 < NS else []
        todo += extra.get(i, [])
        p.wait_vm(("A", i))
        p.wait_vm(("B", 5 * i + 4))
        n = 0
        for k in range(4):
            ab = APOOL[(4 * i + k) % 12]
            for ct in range(5):
                a = VACC + 20 * k + 4 * ct
                c = "0" if i == 0 else f"v[{a}:{a+3}]"
                bs = bslot(5 * i + ct)
                p.e(f"v_mfma_f32_16x16x32_bf16 v[{a}:{a+3}], a[{bs}:{bs+3}], v[{ab}:{ab+3}], {c}")
                if n % 2 == 1 and todo: todo.pop(0)(p)
                n += 1
        while todo: todo.pop(0)(p)
        if i == 13: stamp(p, 12)
        if i in (0, 3, 7, 11): stamp(p, 21 + (i + 1) // 4)
    stamp(p, 13)
    for k in range(1, 4):
        p.e(f"s_add_u32 s{t}, s{S_WAVE}, {k}\ns_and_b32 s{t}, s{t}, 3\ns_mul_i32 s{t}, s{t}, 15360\nv_add_u32 v6, s{t}, v{V_LIN}")
        for ct in range(5):
            a = VACC + 20 * k + 4 * ct
            p.lds(f"ds_write_b128 v6, v[{a}:{a+3}] offset:{(k-1)*5120 + ct*1024}", "red")
    p.e(f"s_mul_i32 s{t}, s{S_WAVE}, 15360\nv_add_u32 v6, s{t}, v{V_LIN}")
    p.wait_vm("res")
    for ct in range(5):
        a = VACC + 4 * ct
        for j in range(2):
            for (src, tmp) in ((VXR, 224), (VBR, 226)):
                p.e(f"v_lshlrev_b32 v{tmp}, 16, v{src+2*ct+j}\nv_and_b32 v{tmp+1}, 0xffff0000, v{src+2*ct+j}")
                p.e(f"v_add_f32 v{a+2*j}, v{a+2*j}, v{tmp}\nv_add_f32 v{a+2*j+1}, v{a+2*j+1}, v{tmp+1}")
    p.wait_lg("red")
    p.e("s_barrier")
    stamp(p, 26)
    for ct in range(5):
        for k in range(3):
            d = VRED + 12 * ct + 4 * k
            p.lds(f"ds_read_b128 v[{d}:{d+3}], v6 offset:{k*5120 + ct*1024}", ("rr", ct))
    for ct in range(5):
        a = VACC + 4 * ct
        p.wait_lg(("rr", ct))
        for k in range(3):
            d = VRED + 12 * ct + 4 * k
            for r in range(4): p.e(f"v_add_f32 v{a+r}, v{a+r}, v{d+r}")
        p.e(f"v_cvt_pk_bf16_f32 v{a}, v{a}, v{a+1}\nv_cvt_pk_bf16_f32 v{a+1}, v{a+2}, v{a+3}")
        p.vmem(f"buffer_store_dwordx2 v[{a}:{a+1}], v4, s[{SRD_OUT}:{SRD_OUT+3}], s{t+3} offen offset:{32*ct}", "out")

def build():
    p = Prog()
    t = T
    prologue(p)
    p0_loads(p)
    srd = srds(p)
    p0_loads2(p)
    srd(SRD_WS, 84, 0x10000000)
    srd(SRD_WQKV, 66, 640 * 3840)
    srd(SRD_W1, 72, 640 * 3456)
    srd(SRD_B1, 74, 3456)
    srd(SRD_B2, 78, 1280)
    srd(SRD_OUT, 80, 2048 * 1280)
    p.e(f"s_mov_b32 s{S_WO}, s68\ns_mov_b32 s{S_WO+1}, s69\ns_mov_b32 s{S_W2}, s76\ns_mov_b32 s{S_W2+1}, s77")
    if not OPT.get('nocp'): code_prefetch(p)
    p.e(f"v_mov_b32 v1, 0\ns_mov_b32 s{t}, {GEN}")
    p.vmem(f"buffer_load_dword v{V_TAG}, v1, {WS}, s{t} offen {SC}", "gen")
    ids(p)
    ring_prefill(p, 0)
    stamp(p, 1)
    def mid(p):
        l2_touch_w(p)
        p1_bias_load(p)
    p0_compute(p, mid)
    stamp(p, 2)
    ring_prefill(p, 1); ring_prefill(p, 2)
    p.wait_vm("gen")
    p.e(f"""v_add_u32 v{V_TAG}, 1, v{V_TAG}
    s_mov_b32 s{t}, 0x9e3779b1
    v_mul_lo_u32 v{V_TAG+1}, v{V_TAG}, s{t}
    v_xor_b32 v{V_TAG+1}, 0x5bd1e995, v{V_TAG+1}
    s_cmp_eq_u32 s{S_WAVE}, 0
    s_cselect_b32 s{t}, 0, {BIG}
    v_mov_b32 v1, {BIG}
    v_mov_b32 v2, s{t}
    v_cmp_eq_u32 vcc, 0, v0
    v_cndmask_b32 v{V_FL0}, v1, v2, vcc""")
    p1_setup2(p)
    p.wait_vm("xnst")
    p.e("s_barrier")
    flag_store(p, F_XN)
    stamp(p, 3)
    tr_issue(p)
    for i in range(3, 8): ring_prefill(p, i)
    p.e(f"v_and_b32 v40, 15, v0\nv_lshlrev_b32 v40, 7, v40\ns_lshl_b32 s{S_PB}, s{S_MB}, 11\ns_add_u32 s{S_PB}, s{S_PB}, {F_XN}")
    poll_issue(p, [40], S_PB, VPOLL, "xpoll")
    b_setup(p); attn_ids_later = True
    poll_check(p, [40], S_PB, VPOLL, "xpoll")
    stamp(p, 4)
    xla = OPT.get("xla", 10)
    for s in range(xla): p1_xload(p, s)
    p.e(f"s_lshl_b32 s{t}, s{S_RT}, 7\ns_add_u32 s{t}, s{t}, {CV}")
    p.vmem(f"buffer_load_dword v{V_C}, v116, {WS}, s{t} offen {SC}", "cload")
    p.wait_lg("bw")
    p.e("s_barrier")
    first = {sl: 16 * sl for sl in range(10)}
    for j in range(5):
        first[10 + j] = 160 + 8 * j; first[15 + j] = 240 + 8 * j
    pre_read, post, pre_mfma = {}, {}, {}
    def bar(*tags, after=None):
        def f(p):
            for tg in tags: p.wait_vm(tg)
            p.e("s_barrier")
            if after: after(p)
        return f
    def at_read(i, f): pre_read.setdefault(i, []).append(f)
    def at_post(i, f): post.setdefault(i, []).append(f)
    def dma(at, sl, sp):
        for q in range(4): at_post(at + q * sp, lambda p, q=q: p1_dma(p, sl, [q]))
    at_read(48, bar())
    dma(45, 8, 4); dma(63, 9, 4)
    at_read(96, bar("trst", after=lambda p: flag_store(p, F_TR)))
    dma(95, 10, 4); dma(111, 11, 4)
    at_read(128, bar("W8", "W9"))
    dma(127, 12, 4); dma(143, 13, 4)
    at_read(160, bar("W10", "W11"))
    dma(158, 14, 2); dma(166, 15, 3)
    at_read(176, bar("W12", "W13", "W14"))
    dma(178, 16, 3); dma(190, 17, 3)
    at_read(224, bar())
    dma(221, 18, 2); dma(229, 19, 2)
    at_read(240, bar("W15", "W16", "W17", "qkvst", after=lambda p: flag_store(p, F_QKV)))
    at_read(264, bar("W18", "W19"))
    for s in range(40): pre_mfma.setdefault(4 * s, []).append(lambda p, s=s: p.wait_vm(f"X{s}"))
    for s in range(xla, 40): at_post(4 * (s - xla) + 3, lambda p, s=s: p1_xload(p, s))
    pre_mfma.setdefault(200, []).append(lambda p: p.wait_vm("cload"))
    def trpoll_issue(p):
        p.e(f"v_lshlrev_b32 v40, 7, v0\nv_add_u32 v41, 0x2000, v40\nv_add_u32 v42, 0x4000, v40\nv_add_u32 v43, 0x6000, v40\ns_mov_b32 s{S_PB}, {F_TR}")
        poll_issue(p, [40, 41, 42, 43], S_PB, VPOLL, "trpoll")
    at_post(170, trpoll_issue)
    at_post(196, lambda p: poll_check(p, [40, 41, 42, 43], S_PB, VPOLL, "trpoll"))
    for n in range(24): at_post(200 + 3 * n, lambda p, n=n: b_load(p, n))
    at_post(272, lambda p: (attn_ids(p), qkv_poll_setup(p)))
    qp = OPT.get("qpoll", 284)
    at_post(qp, lambda p: poll_issue(p, [40], S_PB, VPOLL, "qpoll"))
    for k, i in enumerate((0, 40, 80, 120, 200, 240, 280)):
        pre_mfma.setdefault(i, []).append(lambda p, k=k: stamp(p, 14 + k))
    fill1 = {20: (tr_finish(), 60)}
    g2 = gelu_epilogue(2)
    fill2 = {162: (qkv_epilogue(), 36), 202: (gelu_epilogue(0), 38), 242: (gelu_epilogue(1), 38), 282: (g2, 38)}
    for j in range(LA):
        for r in p1_reads(j): p.lds(r, ("wf", j))
    p.e(f"s_cmp_ge_u32 s{S_NB}, 10\ns_cbranch_scc1 L_p1v")
    vm0, lg0 = list(p.vm), list(p.lg)
    run_stream(p, 0, 160, 320, lambda i: p1_mfma(i, False), p1_reads, pre_mfma, pre_read, post, fill1, LA)
    p.e("s_branch L_p1j")
    p.label("L_p1v")
    p.vm, p.lg = vm0, lg0
    fill1 = {20: (tr_finish(), 60)}
    run_stream(p, 0, 160, 320, lambda i: p1_mfma(i, True), p1_reads, pre_mfma, pre_read, post, fill1, LA)
    p.label("L_p1j")
    stamp(p, 5)
    run_stream(p, 160, 320, 320, lambda i: p1_mfma(i, False), p1_reads, pre_mfma, pre_read, post, fill2, LA)
    stamp(p, 6)
    poll_check(p, [40], S_PB, VPOLL, "qpoll")
    stamp(p, 28)
    al = attn_loads()
    nl = [i for i, (w, f) in enumerate(al)]
    cut = max(i for i, (w, f) in enumerate(al) if "vmem" in f.__code__.co_names) + 1
    for w, f in al[:cut]: f(p)
    for w, f in al[cut:cut + 9]: f(p)
    g3 = gelu_epilogue(3)
    bn = 24
    for k, (w, f) in enumerate(g3):
        f(p)
        if k % 18 == 17 and bn < 32:
            b_load(p, bn); bn += 1
    for w, f in al[cut + 9:]: f(p)
    stamp(p, 7)
    p.wait_vm("Q")
    p.e("s_barrier")
    stamp(p, 8)
    extraA = {}
    for ui in range(16):
        if bn < 48:
            extraA.setdefault(ui, []).append(lambda p, n=bn: b_load(p, n)); bn += 1
    def mid(p):
        p.wait_vm("hst"); p.e("s_barrier"); flag_store(p, F_H)
    extraB = {}
    for ui in range(8):
        for k in range(2):
            if bn < 64:
                extraB.setdefault(ui, []).append(lambda p, n=bn: b_load(p, n)); bn += 1
    assert bn == 64
    ps = p4_setup()
    for k, f in enumerate(ps): extraB.setdefault(2 + k, []).append(f)
    assert 2 + len(ps) <= 11
    extraB.setdefault(11, []).append(lambda p: poll_issue(p, [VPOFF4], S_PB, VPOLL4, "hpoll"))
    extraB.setdefault(13, []).append(lambda p: poll_check(p, [VPOFF4], S_PB, VPOLL4, "hpoll"))
    for i in range(2):
        for k in range(4): extraB.setdefault(14 + i, []).append(lambda p, i=i, k=k: a_load(p, i, k))
    attn_main(p, extraA, mid, extraB)
    stamp(p, 11)
    phase4(p)
    stamp(p, 27)
    p.e(f"s_cmp_eq_u32 s2, 0\ns_cselect_b32 s{t}, {GEN}, s{t+13}\ns_mov_b32 s{t+1}, {BIG}\ns_cselect_b32 s{t}, s{t}, s{t+1}")
    p.vmem(f"buffer_store_dword v{V_TAG}, v{V_FL0}, {WS}, s{t} offen {SC}", "gen2")
    stamp_flush(p)
    body = p.finalize()
    print("instructions:", len(p.ins), "pad states:", p.npad, file=sys.stderr)
    return f"""; @launch grid=(256,1,1) block=(256,1,1) lds={LDS_BYTES}
.amdgcn_target "amdgcn-amd-amdhsa--gfx950"
.text
.globl {KN}
.p2align 8
.type {KN},@function
{KN}:
{body}L_end:
  s_endpgm
.section .rodata,"a"
.p2align 6
.amdhsa_kernel {KN}
  .amdhsa_next_free_vgpr 512
  .amdhsa_next_free_sgpr 102
  .amdhsa_accum_offset 256
  .amdhsa_group_segment_fixed_size 0
  .amdhsa_kernarg_size 88
  .amdhsa_user_sgpr_count 2
  .amdhsa_user_sgpr_kernarg_segment_ptr 1
  .amdhsa_system_sgpr_workgroup_id_x 1
.end_amdhsa_kernel
"""

if __name__ == "__main__":
    DIAG = "diag" in sys.argv[2:]
    for a in sys.argv[2:]:
        if "=" in a:
            k, v = a.split("="); OPT[k] = int(v)
    if OPT.get("plainst"): SST = ""
    out = sys.argv[1] if len(sys.argv) > 1 else f"cdna_kernels/{NAME}.s"
    open(out, "w").write(build())
```

```python
import sys, math, struct
from asmlib import *

NAME = "parallel_sum__sliding_block__mixer_channel_mlp__prompt"
KN = NAME + "_kernel"
BIG = 0x40000000
OPT = {}
DIAG = False
def O(k, d): return OPT.get(k, d)
XN, CV, QK, VT, HH, OO, W2T, FLG = 0, 0x280000, 0x290000, 0x790000, 0xA10000, 0x10D0000, 0x1350000, 0x1640000
F_XN, F_TR, F_QKV, F_H, F_O = [FLG + i * 0x8000 for i in range(5)]
GEN = FLG + 5 * 0x8000
STAMPS = 0x2000000
L_BIAS, L_STAT, L_TR = 131072, 131584, 132096
L_K, L_V = 4 * 16384, 139264
L_BA, L_BB = 0, 98304
LDS_BYTES = 163840
S_WAVE = 3
SRD_X, SRD_WS, SRD_W1, SRD_WQKV, SRD_OUT, SRD_B2, SRD_WT, SRD_B1 = 4, 8, 12, 16, 20, 24, 28, 32
S_XCD, S_U = 40, 41
T = 44
S_KB, S_VB, S_QB0, S_OB, S_KMIN, S_FO, S_F1, S_AH = range(32, 40)
S_AO, S_COL, S_VX, S_NH = 42, 43, 58, 73
S_BH, S_BO, S_BCUR, S_BI, S_AI, S_ROTO, S_BCUR2, S_ACUR, S_MB4, S_BL = range(88, 98)
S_H1, S_H0 = 60, 61
S_MB, S_NB, S_RT, S_W1B, S_P0B, S_P1B, S_WOFF, S_M0W, S_SCALE, S_XB, S_ROT = range(62, 73)
S_E, S_PB, S_XO = 74, 82, 83
S_TRU, S_TRS, S_TRC, S_TRO = 84, 85, 86, 87
S_TRIP = [12, 14, 16, 18, 60, 62, 64, 66, 68, 70, 74, 76, 78, 80, 28, 30]
S_AM = [84, 85, 86, 87, 52, 53, 54, 55]
WS = f"s[{SRD_WS}:{SRD_WS+3}]"
SC = "sc1"
VQ, VDV = 8, 24
VOM, VOT, VKA, VKT, VVA, VONE = range(29, 35)
V_LIN, V_FL0, VSTAMP, V_TAG = 35, 36, 37, 38
VVB = 40
V_BIAS, V_TMP = 64, 80
V_T1, V_T1H, V_T2, V_T2H, V_DW1, V_DW2, V_EOFF, V_C, V_BADDR, V_K1, V_K2, V_QPO = range(100, 112)
VAH, VAO, V_HPO, V_OPO, V_RX, V_RB = 112, 116, 120, 121, 122, 123
V_TRA, V_CO, V_XD = 124, 125, 126
V_ACC1, V_ACC2 = 128, 192
WFPOOL = [224 + 4 * i for i in range(8)]
V_TRF = 192
A_X = 0
VS, VKB, VP, VO, VML, VMX = 64, 128, 144, 160, 192, 200
APOOL = [204 + 4 * i for i in range(13)] + [192, 196, 200]
ACCQ = [64 + 4 * i for i in range(12)] + [128 + 4 * i for i in range(8)]
BLPOOL = [160 + 4 * i for i in range(8)]
VXR, VBR, VRED = 8, 18, 192

def f2u(x): return struct.unpack("<I", struct.pack("<f", x))[0]

def stamp(p, i, real=False, grp="main"):
    if not DIAG: return
    if i < 30 and grp != ["main", "p4", "p1", "at"][O("sg", 0)]: return
    p.e(("s_memrealtime" if real else "s_memtime") + " s[100:101]")
    if not real and i < 30: p.e("s_memrealtime s[98:99]")
    p.e("s_waitcnt lgkmcnt(0)"); p.lg = []
    p.e(f"v_writelane_b32 v{VSTAMP}, s100, {i}")
    if not real and i < 30: p.e(f"v_writelane_b32 v{VSTAMP}, s98, {i+30}")
def stamp_flush(p):
    if not DIAG: return
    p.wait_all()
    stamp(p, 62); stamp(p, 63, True)
    p.e(f"""s_lshl_b32 s98, s2, 2
    s_add_u32 s98, s98, s{S_WAVE}
    s_lshl_b32 s98, s98, 8
    s_add_u32 s98, s98, {STAMPS}
    v_lshlrev_b32 v1, 2, v0
    buffer_store_dword v{VSTAMP}, v1, {WS}, s98 offen""")

def rbf16(p, d, s):
    p.e(f"v_cvt_pk_bf16_f32 v{d}, v{s}, v{s}\nv_and_b32 v{d}, 0xffff0000, v{d}")

def lines(F, s, w=1):
    for x in s.strip().split("\n"):
        F.append((w, lambda p, x=x: p.e(x)))

def flag_store(p, base, sidx=2, sh=3):
    p.e(f"s_lshl_b32 s{T+12}, s{sidx}, {sh}\ns_add_u32 s{T+12}, s{T+12}, {base}")
    p.vmem(f"buffer_store_dwordx2 v[{V_TAG}:{V_TAG+1}], v{V_FL0}, {WS}, s{T+12} offen {SC}", "flag")
npoll = [0]
def poll_loads(voff, vdst):
    if voff == "all":
        return [f"buffer_load_dwordx4 v[{vdst+4*i}:{vdst+4*i+3}], v{V_LIN}, {WS}, s{S_PB} offen offset:{1024*i} {SC}" for i in range(2)], 4
    return [f"buffer_load_dwordx2 v[{vdst}:{vdst+1}], v{voff}, {WS}, s{S_PB} offen {SC}"], 1
def poll_issue(p, base, voff, vdst, tag):
    if base is not None: p.e(f"s_mov_b32 s{S_PB}, {base}")
    for x in poll_loads(voff, vdst)[0]: p.vmem(x, tag)
def poll_check(p, voff, vdst, tag):
    k = npoll[0]; npoll[0] += 1
    def cmpall():
        for i in range(poll_loads(voff, vdst)[1]):
            a = vdst + 2 * i
            p.e(f"v_xor_b32 v{a}, v{V_TAG}, v{a}\nv_xor_b32 v{a+1}, v{V_TAG+1}, v{a+1}")
            p.e(f"v_or_b32 v{vdst}, v{vdst}, v{vdst+1}" if i == 0 else f"v_or3_b32 v{vdst}, v{vdst}, v{a}, v{a+1}")
        p.e(f"v_cmp_ne_u32 vcc, 0, v{vdst}\ns_nop 4")
    p.wait_vm(tag)
    cmpall()
    p.e(f"s_cbranch_vccz L_pok{k}\ns_mov_b32 s{T+13}, 0")
    p.label(f"L_pspin{k}")
    p.e("s_sleep 1")
    for x in poll_loads(voff, vdst)[0]: p.e(x)
    p.e(f"s_add_u32 s{T+13}, s{T+13}, 1\ns_waitcnt vmcnt(0)")
    cmpall()
    p.e(f"s_cmp_gt_u32 s{T+13}, 100000\ns_cbranch_scc1 L_pok{k}\ns_cbranch_vccnz L_pspin{k}")
    p.label(f"L_pok{k}")

def srd(p, d, src, n):
    p.e(f"s_mov_b32 s{d}, s{src}\ns_mov_b32 s{d+1}, s{src+1}\ns_mov_b32 s{d+2}, {n}\ns_mov_b32 s{d+3}, 0x00020000")

PR, PE, PM, PD = 128, 140, 164, 186
def start0(p):
    t = T
    p.e(f"""
    s_load_dwordx2 s[{SRD_X}:{SRD_X+1}], s[0:1], 0
    s_load_dwordx2 s[{SRD_WS}:{SRD_WS+1}], s[0:1], 80
    s_load_dwordx2 s[{SRD_WQKV}:{SRD_WQKV+1}], s[0:1], 8
    s_load_dwordx16 s[64:79], s[0:1], 16
    s_cmp_ge_u32 s2, 256
    s_cbranch_scc1 L_end""")
    if DIAG:
        p.e(f"v_mov_b32 v{VSTAMP}, 0")
        p.e("s_memrealtime s[98:99]\ns_memtime s[100:101]")
    if not O("nocp", 0):
        p.e(f"""s_getpc_b64 s[{t+4}:{t+5}]
        L_pc:
        s_mov_b32 s{t+6}, L_end-L_pc
        s_mov_b32 s{t+7}, 0x00020000
        v_lshlrev_b32 v1, 4, v0
        s_lshr_b32 s{t}, s2, 3
        s_lshl_b32 s{t}, s{t}, 12""")
        p.vmem(f"buffer_load_dwordx4 v[{PD}:{PD+3}], v1, s[{t+4}:{t+7}], s{t} offen", "touch")
    p.e(f"""
    v_lshrrev_b32 v1, 6, v0
    v_and_b32 v0, 63, v0
    v_readfirstlane_b32 s{S_WAVE}, v1
    v_and_b32 v2, 7, v0
    v_lshrrev_b32 v3, 3, v0
    s_lshl_b32 s{t+8}, s2, 3
    v_add_u32 v{PM}, s{t+8}, v2
    v_mul_u32_u24 v{PM}, 1280, v{PM}
    v_lshl_add_u32 v{PM}, v3, 4, v{PM}
    s_lshl_b32 s{t+9}, s{S_WAVE}, 7
    s_add_u32 s{t+10}, s{t+9}, 1024
    s_cmp_lt_u32 s{S_WAVE}, 2
    s_cselect_b32 s{t+10}, s{t+10}, {BIG}
    s_mov_b32 s{SRD_X+2}, {2048*1280}
    s_mov_b32 s{SRD_X+3}, 0x00020000
    s_mov_b32 s{SRD_WS+2}, 0x10000000
    s_mov_b32 s{SRD_WS+3}, 0x00020000
    s_mov_b32 s{SRD_WQKV+2}, {640*3840}
    s_mov_b32 s{SRD_WQKV+3}, 0x00020000
    s_and_b32 s{S_XCD}, s2, 7
    s_lshr_b32 s{S_U}, s2, 3
    s_waitcnt lgkmcnt(0)
    """)
    if DIAG:
        p.e(f"v_writelane_b32 v{VSTAMP}, s98, 61\nv_writelane_b32 v{VSTAMP}, s98, 30\nv_writelane_b32 v{VSTAMP}, s100, 0")
    p.vmem(f"buffer_load_dwordx4 v[{PR}:{PR+3}], v{PM}, s[{SRD_X}:{SRD_X+3}], s{t+9} offen", "x0")
    p.vmem(f"buffer_load_dwordx4 v[{PR+4}:{PR+7}], v{PM}, s[{SRD_X}:{SRD_X+3}], s{t+9} offen offset:512", "x1")
    p.vmem(f"buffer_load_dwordx4 v[{PR+8}:{PR+11}], v{PM}, s[{SRD_X}:{SRD_X+3}], s{t+10} offen", "x2")
    srd(p, SRD_W1, 68, 640 * 3456); srd(p, SRD_B1, 70, 3456); srd(p, SRD_B2, 74, 1280); srd(p, SRD_OUT, 76, 2048 * 1280)
    p.e(f"""
    s_mul_i32 s{S_TRU}, s2, 3
    s_add_u32 s{S_TRU}, s{S_TRU}, s{S_WAVE}
    s_cmp_lt_u32 s{S_WAVE}, 3
    s_cselect_b32 s{S_TRU}, s{S_TRU}, 1000
    s_mul_i32 s{S_TRS}, s{S_TRU}, 6554
    s_lshr_b32 s{S_TRS}, s{S_TRS}, 16
    s_cmp_lt_u32 s{S_TRS}, 54
    s_cselect_b32 s{SRD_WT}, s72, s64
    s_cselect_b32 s{SRD_WT+1}, s73, s65
    s_mov_b32 s{SRD_WT+2}, {640*1280}
    s_cmov_b32 s{SRD_WT+2}, {1728*1280}
    s_mov_b32 s{SRD_WT+3}, 0x00020000
    s_cselect_b32 s{S_TRO}, 0, 54
    """)
    p.e(f"""
    s_and_b32 s{S_MB}, s{S_XCD}, 1
    s_lshl_b32 s{S_MB}, s{S_MB}, 3
    s_and_b32 s{S_ROT}, s{S_U}, 7
    s_add_u32 s{S_MB}, s{S_MB}, s{S_ROT}
    s_lshr_b32 s{S_NB}, s{S_XCD}, 1
    s_lshl_b32 s{S_NB}, s{S_NB}, 2
    s_lshr_b32 s{t}, s{S_U}, 3
    s_add_u32 s{S_NB}, s{S_NB}, s{t}
    s_mul_i32 s{t}, s{t}, {O("rotx", 3)}
    s_mul_i32 s{S_ROT}, s{S_ROT}, {O("rotw", 1)}
    s_add_u32 s{S_ROT}, s{S_ROT}, s{t}
    s_sub_u32 s{t}, s{S_ROT}, 10
    s_cmp_ge_u32 s{S_ROT}, 10
    s_cselect_b32 s{S_ROT}, s{t}, s{S_ROT}
    s_lshl_b32 s{t}, s{S_NB}, 8
    s_mul_i32 s{t+1}, s{S_WAVE}, {16*3840}
    s_add_u32 s{t}, s{t}, s{t+1}
    s_cmp_lt_u32 s{S_NB}, 15
    s_cselect_b32 s{S_W1B}, s{t}, {BIG}
    s_lshl_b32 s{S_M0W}, s{S_WAVE}, 12
    v_bfe_u32 v4, v0, 2, 2
    v_and_b32 v5, 3, v0
    v_lshrrev_b32 v6, 4, v0
    v_mul_u32_u24 v{V_DW1}, 3840, v4
    v_lshl_add_u32 v{V_DW1}, v6, 6, v{V_DW1}
    v_lshl_add_u32 v{V_DW1}, v5, 4, v{V_DW1}
    """)

def rot_idx(p, d, add, base):
    p.e(f"s_add_u32 s{d}, s{base}, {add}\ns_sub_u32 s{S_WOFF}, s{d}, 10\ns_cmp_ge_u32 s{d}, 10\ns_cselect_b32 s{d}, s{S_WOFF}, s{d}")

def small_loads(p):
    t = T
    p.e(f"""v_mov_b32 v1, 0
    s_mov_b32 s{t}, {GEN}
    s_and_b32 s{t+1}, s{S_WAVE}, 1
    s_lshl_b32 s{t+1}, s{t+1}, 6
    v_add_u32 v127, s{t+1}, v0
    v_lshlrev_b32 v7, 1, v127
    s_lshl_b32 s{t+1}, s{S_NB}, 8""")
    p.vmem(f"buffer_load_dword v{V_TAG}, v1, {WS}, s{t} offen {SC}", "gen")
    p.vmem(f"buffer_load_ushort v126, v7, s[{SRD_B1}:{SRD_B1+3}], s{t+1} offen", "b1")

def setup_early(p):
    t = T
    p.e(f"""
    s_cmp_eq_u32 s{S_WAVE}, 0
    s_cselect_b32 s{t}, 0, {BIG}
    v_mov_b32 v1, {BIG}
    v_mov_b32 v7, s{t}
    v_cmp_eq_u32 vcc, 0, v0
    v_cndmask_b32 v{V_FL0}, v1, v7, vcc
    s_mul_i32 s{S_TRC}, s{S_TRS}, 10
    s_sub_u32 s{S_TRC}, s{S_TRU}, s{S_TRC}
    s_sub_u32 s{S_TRO}, s{S_TRS}, s{S_TRO}
    s_mul_i32 s{S_TRO}, s{S_TRO}, {32*1280}
    s_lshl_b32 s{t+1}, s{S_TRC}, 7
    s_add_u32 s{S_TRO}, s{S_TRO}, s{t+1}
    s_cmp_lt_u32 s{S_TRU}, 740
    s_cselect_b32 s{S_TRO}, s{S_TRO}, {BIG}
    v_lshlrev_b32 v127, 2, v127
    v_add_u32 v127, {L_BIAS}, v127
    v_lshrrev_b32 v64, 3, v0
    v_mul_u32_u24 v64, 1280, v64
    v_and_b32 v1, 7, v0
    v_lshl_add_u32 v64, v1, 4, v64
    """)

def setup_all(p):
    t = T
    p.e(f"""
    v_lshlrev_b32 v{V_LIN}, 4, v0
    s_lshl_b32 s{S_RT}, s{S_MB}, 2
    s_add_u32 s{S_RT}, s{S_RT}, s{S_WAVE}
    s_lshr_b32 s{t}, s{S_WAVE}, 1
    s_add_u32 s{S_ROT2}, s{S_ROT}, s{t}
    s_sub_u32 s{t}, s{S_ROT2}, 10
    s_cmp_ge_u32 s{S_ROT2}, 10
    s_cselect_b32 s{S_ROT2}, s{t}, s{S_ROT2}
    s_lshl_b32 s{t}, s{S_NB}, 8
    s_and_b32 s{t+1}, s{S_WAVE}, 1
    s_mul_i32 s{t+1}, s{t+1}, {32*3456}
    s_add_u32 s{t}, s{t}, s{t+1}
    s_cmp_lt_u32 s{S_NB}, 14
    s_cselect_b32 s{S_P0B}, s{t}, {BIG}
    s_add_u32 s{t}, s{t}, 128
    s_cmp_lt_u32 s{S_NB}, 13
    s_cselect_b32 s{S_P1B}, s{t}, {BIG}
    v_lshrrev_b32 v7, 5, v0
    v_lshl_add_u32 v{V_DW2}, v7, 2, v4
    v_mul_u32_u24 v{V_DW2}, 3456, v{V_DW2}
    v_and_b32 v1, 1, v6
    v_lshl_add_u32 v{V_DW2}, v1, 6, v{V_DW2}
    v_lshl_add_u32 v{V_DW2}, v5, 4, v{V_DW2}
    v_lshlrev_b32 v{V_TRA}, 10, v6
    v_lshl_add_u32 v{V_TRA}, v4, 7, v{V_TRA}
    v_lshl_add_u32 v{V_TRA}, v5, 3, v{V_TRA}
    s_add_u32 s{t}, s{S_M0W}, {L_TR}
    v_add_u32 v{V_TRA}, s{t}, v{V_TRA}
    v_lshlrev_b32 v4, 6, v4
    v_lshl_add_u32 v4, v1, 5, v4
    v_lshrrev_b32 v1, 1, v5
    v_and_b32 v6, 1, v5
    v_lshl_add_u32 v1, v6, 1, v1
    v_lshl_add_u32 v6, v1, 3, v4
    v_lshl_add_u32 v1, v5, 3, v4
    v_lshl_add_u32 v{V_T2}, v7, 10, v6
    v_add_u32 v{V_T2H}, 0x10000, v{V_T2}
    s_cmp_lt_u32 s{S_NB}, 10
    s_cselect_b64 vcc, -1, 0
    v_cndmask_b32 v1, v1, v6, vcc
    v_lshl_add_u32 v{V_T1}, v7, 11, v1
    v_add_u32 v{V_T1H}, 0x10000, v{V_T1}
    v_and_b32 v{V_CO}, 31, v0
    v_lshlrev_b32 v1, 5, v{V_CO}
    v_lshl_add_u32 v1, v7, 4, v1
    v_cndmask_b32 v{V_EOFF}, v1, v{V_LIN}, vcc
    s_mul_i32 s{t}, s{S_RT}, 160
    s_lshl_b32 s{t+1}, s{S_NB}, 4
    s_add_u32 s{t}, s{t}, s{t+1}
    s_lshl_b32 s{t}, s{t}, 9
    s_add_u32 s{t}, s{t}, {QK}
    s_mul_i32 s{S_XB}, s{S_RT}, 40960
    s_sub_u32 s{t+2}, s{S_NB}, 10
    s_lshl_b32 s{t+2}, s{t+2}, 12
    s_add_u32 s{t+1}, s{S_XB}, s{t+2}
    s_add_u32 s{t+1}, s{t+1}, {VT}
    s_cmp_lt_u32 s{S_NB}, 10
    s_cselect_b32 s{t}, s{t}, s{t+1}
    s_mov_b32 s{t+1}, 20480
    s_cmov_b32 s{t+1}, 1024
    s_mov_b32 s{t+2}, 1024
    s_cmov_b32 s{t+2}, 2048
    s_cmp_lt_u32 s{S_NB}, 15
    s_cselect_b32 s{S_E}, s{t}, {BIG}
    s_add_u32 s{S_E+1}, s{S_E}, s{t+1}
    s_add_u32 s{S_E+2}, s{S_E}, s{t+2}
    s_add_u32 s{S_E+3}, s{S_E+1}, s{t+2}
    s_add_u32 s{S_E+4}, s{S_E+2}, s{t+2}
    s_add_u32 s{S_E+5}, s{S_E+3}, s{t+2}
    s_add_u32 s{S_E+6}, s{S_E+4}, s{t+2}
    s_add_u32 s{S_E+7}, s{S_E+5}, s{t+2}
    s_cmp_lt_u32 s{S_NB}, 5
    s_cselect_b32 s{S_SCALE}, {f2u(20**-0.5 * math.log2(math.e)):#x}, 1.0
    s_mul_i32 s{t}, s{S_RT}, 216
    s_lshl_b32 s{t+1}, s{S_NB}, 4
    s_add_u32 s{t}, s{t}, s{t+1}
    s_lshl_b32 s{t}, s{t}, 9
    s_add_u32 s{t}, s{t}, {HH}
    s_cmp_lt_u32 s{S_NB}, 14
    s_cselect_b32 s{S_H0}, s{t}, {BIG}
    s_add_u32 s{t}, s{t}, 4096
    s_cmp_lt_u32 s{S_NB}, 13
    s_cselect_b32 s{S_H1}, s{t}, {BIG}
    v_mov_b32 v{V_K1}, {f2u(-2*0.7978845608028654*math.log2(math.e)*0.044715):#x}
    v_mov_b32 v{V_K2}, {f2u(-2*0.7978845608028654*math.log2(math.e)):#x}
    v_lshlrev_b32 v{V_BADDR}, 5, v7
    v_add_u32 v{V_BADDR}, {L_BIAS}, v{V_BADDR}
    s_lshl_b32 s{S_F1}, s{S_MB}, 4
    s_add_u32 s{S_F1}, s{S_F1}, s{S_NB}
    """)
    hd, qb, odd, c0 = t + 4, t + 5, t + 6, t + 7
    p.e(f"""
    s_lshl_b32 s{hd}, s{S_XCD}, 2
    s_and_b32 s{t}, s{S_U}, 3
    s_add_u32 s{hd}, s{hd}, s{t}
    s_lshr_b32 s{qb}, s{S_U}, 2
    s_and_b32 s{odd}, s{hd}, 1
    s_lshr_b32 s{c0}, s{hd}, 1
    s_mul_i32 s{c0}, s{c0}, 5
    s_lshl_b32 s{t}, s{odd}, 1
    s_add_u32 s{c0}, s{c0}, s{t}
    s_lshl_b32 s{S_FO}, s{qb}, 5
    s_add_u32 s{S_FO}, s{S_FO}, s{hd}
    s_lshl_b32 s{t}, s{qb}, 3
    s_lshl_b32 s{t+1}, s{S_WAVE}, 2
    s_add_u32 s{t}, s{t}, s{t+1}
    s_sub_u32 s{t+1}, s{t}, 8
    s_cmp_lt_u32 s{t}, 8
    s_cselect_b32 s{t}, s{t}, s{t+1}
    s_mul_i32 s{S_KB}, s{t}, 160
    s_add_u32 s{S_KB}, s{S_KB}, s{c0}
    s_add_u32 s{S_KB}, s{S_KB}, 80
    s_lshl_b32 s{S_KB}, s{S_KB}, 9
    s_add_u32 s{S_KB}, s{S_KB}, {QK}
    s_mul_i32 s{S_VB}, s{t}, 40960
    s_mul_i32 s{t+1}, s{hd}, 640
    s_add_u32 s{S_VB}, s{S_VB}, s{t+1}
    s_add_u32 s{S_VB}, s{S_VB}, {VT}
    s_lshl_b32 s{t}, s{qb}, 3
    s_lshl_b32 s{t+1}, s{S_WAVE}, 1
    s_add_u32 s{t}, s{t}, s{t+1}
    s_mul_i32 s{S_QB0}, s{t}, 160
    s_add_u32 s{S_QB0}, s{S_QB0}, s{c0}
    s_lshl_b32 s{S_QB0}, s{S_QB0}, 9
    s_add_u32 s{S_QB0}, s{S_QB0}, {QK}
    s_mul_i32 s{S_OB}, s{t}, 80
    s_add_u32 s{S_OB}, s{S_OB}, s{c0}
    s_lshl_b32 s{S_OB}, s{S_OB}, 9
    s_add_u32 s{S_OB}, s{S_OB}, {OO}
    s_sub_u32 s{t+1}, 8, s{t+1}
    s_cmp_eq_u32 s{qb}, 0
    s_cselect_b32 s{S_KMIN}, s{t+1}, 0
    s_mov_b32 s{S_VX}, 0xfffff
    s_mov_b32 s{S_VX+1}, 0xfffff
    v_lshrrev_b32 v1, 4, v0
    s_lshl_b32 s{t}, s{qb}, 1
    s_sub_u32 s{t}, s{t}, 2
    v_add_u32 v1, s{t}, v1
    v_max_i32 v1, 0, v1
    v_and_b32 v4, 15, v0
    v_min_u32 v4, 14, v4
    v_lshl_add_u32 v1, v1, 4, v4
    v_lshlrev_b32 v{V_QPO}, 3, v1
    s_lshl_b32 s{t}, s{odd}, 9
    v_add_u32 v{VOM}, s{t}, v{V_LIN}
    v_lshlrev_b32 v1, 4, v{V_CO}
    s_cmp_eq_u32 s{odd}, 0
    s_cselect_b32 s{t}, 1024, 8
    v_add_u32 v{VKT}, s{t}, v1
    v_mov_b32 v4, {BIG}
    v_cmp_lt_u32 vcc, 31, v0
    v_cndmask_b32 v{VOT}, v{VKT}, v4, vcc
    v_mov_b32 v1, 1.0
    v_cndmask_b32 v{VONE}, v1, 0, vcc
    v_mov_b32 v1, 0x3f80
    v_cndmask_b32 v{VQ+6}, v1, 0, vcc
    v_mov_b32 v{VQ+7}, 0
    v_mov_b32 v{VQ+14}, v{VQ+6}
    v_mov_b32 v{VQ+15}, 0
    s_add_u32 s{t}, s{S_M0W}, {L_K}
    v_add_u32 v{VKA}, s{t}, v{VOM}
    v_add_u32 v{VKT}, s{t}, v{VKT}
    v_bfe_u32 v1, v0, 2, 1
    v_bfe_u32 v4, v0, 3, 1
    v_lshl_add_u32 v5, v1, 3, v5
    v_lshl_add_u32 v5, v4, 2, v5
    s_lshl_b32 s{t}, s{odd}, 2
    v_add_u32 v5, s{t}, v5
    s_lshl_b32 s{t}, s{odd}, 4
    v_subrev_u32 v4, s{t}, v{V_CO}
    v_cmp_gt_u32 vcc, 16, v{V_CO}
    v_cndmask_b32 v5, v4, v5, vcc
    v_lshlrev_b32 v5, 5, v5
    v_lshl_add_u32 v5, v7, 4, v5
    s_mul_i32 s{t}, s{S_WAVE}, {4*640}
    s_add_u32 s{t}, s{t}, {L_V}
    v_add_u32 v{VVA}, s{t}, v5
    v_lshlrev_b32 v{V_CO}, 2, v{V_CO}
    """)
    for i in range(5):
        p.e(f"""v_add_u32 v1, {64*i}, v0
        v_mul_u32_u24 v4, 1639, v1
        v_lshrrev_b32 v4, 16, v4
        v_mul_u32_u24 v5, 40, v4
        v_sub_u32 v1, v1, v5
        v_mul_u32_u24 v4, 20480, v4
        v_lshl_add_u32 v{VDV+i}, v1, 4, v4""")
        if 0 < i < 4: p.e(f"v_subrev_u32 v{VDV+i}, {1024*i}, v{VDV+i}")
    for i in range(24): p.e(f"v_mov_b32 v{VVB+i}, 0x3f803f80")
    p.e("; CUT_P4")
    nt = t + 4
    p.e(f"""
    s_lshl_b32 s{S_MB4}, s{S_XCD}, 2
    s_lshr_b32 s{t}, s{S_U}, 3
    s_add_u32 s{S_MB4}, s{S_MB4}, s{t}
    s_and_b32 s{nt}, s{S_U}, 7
    s_mul_i32 s{S_COL}, s{nt}, 160
    s_cmp_lt_u32 s{S_WAVE}, 2
    s_cselect_b32 s{S_NH}, 14, 13
    s_mul_i32 s{S_BI}, s{nt}, 7
    s_mul_i32 s{t+1}, s{t}, {14 * O("rotb", 0)}
    s_add_u32 s{S_BI}, s{S_BI}, s{t+1}
    s_lshr_b32 s{S_BI}, s{S_BI}, 2
    s_sub_u32 s{t+1}, s{S_BI}, s{S_NH}
    s_cmp_ge_u32 s{S_BI}, s{S_NH}
    s_cselect_b32 s{S_BI}, s{t+1}, s{S_BI}
    s_mov_b32 s{S_AI}, s{S_BI}
    s_add_u32 s{S_ROTO}, s{nt}, s{t}
    s_mul_i32 s{t+1}, s{S_ROTO}, 52
    s_lshr_b32 s{t+1}, s{t+1}, 8
    s_mul_i32 s{t+1}, s{t+1}, 5
    s_sub_u32 s{S_ROTO}, s{S_ROTO}, s{t+1}
    s_mul_i32 s{t}, s{S_WAVE}, 14
    s_cmp_eq_u32 s{S_WAVE}, 3
    s_cselect_b32 s{t+1}, 1, 0
    s_sub_u32 s{t}, s{t}, s{t+1}
    s_mul_i32 s{t+2}, s{nt}, 74
    s_add_u32 s{S_BH}, s{t+2}, s{t}
    s_mul_i32 s{S_BH}, s{S_BH}, 5120
    s_add_u32 s{S_BH}, s{S_BH}, {W2T}
    s_mul_i32 s{S_AH}, s{S_MB4}, {2*110592}
    s_lshl_b32 s{t+1}, s{t}, 11
    s_add_u32 s{S_AH}, s{S_AH}, s{t+1}
    s_add_u32 s{S_AH}, s{S_AH}, {HH}
    s_mul_i32 s{t}, s{S_WAVE}, 5
    s_add_u32 s{S_BO}, s{t+2}, s{t}
    s_add_u32 s{S_BO}, s{S_BO}, 54
    s_mul_i32 s{S_BO}, s{S_BO}, 5120
    s_add_u32 s{S_BO}, s{S_BO}, {W2T}
    s_mul_i32 s{S_AO}, s{S_MB4}, {2*40960}
    s_lshl_b32 s{t+1}, s{t}, 11
    s_add_u32 s{S_AO}, s{S_AO}, s{t+1}
    s_add_u32 s{S_AO}, s{S_AO}, {OO}
    v_lshrrev_b32 v1, 4, v0
    v_and_b32 v4, 15, v0
    v_lshlrev_b32 v5, 9, v1
    v_lshl_add_u32 v5, v4, 4, v5
    s_lshl_b32 s{t}, s{S_MB4}, 6
    s_lshl_b32 s{t+1}, s{S_WAVE}, 4
    s_add_u32 s{t}, s{t}, s{t+1}
    v_add_u32 v{V_RX}, s{t}, v4
    v_mul_u32_u24 v{V_RX}, 1280, v{V_RX}
    v_lshlrev_b32 v{V_RB}, 3, v1
    v_add_u32 v{V_RX}, v{V_RX}, v{V_RB}
    s_lshr_b32 s{t}, s{S_MB4}, 1
    s_lshl_b32 s{t}, s{t}, 4
    v_min_u32 v1, 13, v0
    v_add_u32 v1, s{t}, v1
    v_lshlrev_b32 v{V_HPO}, 3, v1
    s_lshr_b32 s{t}, s{S_MB4}, 2
    s_lshl_b32 s{t}, s{t}, 5
    v_and_b32 v1, 31, v0
    v_add_u32 v1, s{t}, v1
    v_lshlrev_b32 v{V_OPO}, 3, v1
    """)
    for k in range(4):
        p.e(f"""s_add_u32 s{t}, s{S_WAVE}, {k}
        s_and_b32 s{t}, s{t}, 3
        s_lshr_b32 s{t+1}, s{t}, 1
        s_and_b32 s{t}, s{t}, 1
        s_lshl_b32 s{t}, s{t}, 8
        s_mul_i32 s{t+2}, s{t+1}, 110592
        s_add_u32 s{t+2}, s{t+2}, s{t}
        v_add_u32 v{VAH+k}, s{t+2}, v5
        s_mul_i32 s{t+2}, s{t+1}, 40960
        s_add_u32 s{t+2}, s{t+2}, s{t}
        v_add_u32 v{VAO+k}, s{t+2}, v5""")

def l2_touch_w(p):
    t = T
    p.e(f"""s_lshl_b32 s{t}, s{S_ROT}, 2
    s_add_u32 s{t}, s{t}, s{S_WAVE}
    s_mul_i32 s{t+1}, s{t}, {4*3840}
    s_lshl_b32 s{t+2}, s{S_NB}, 8
    s_add_u32 s{t+1}, s{t+1}, s{t+2}
    s_add_u32 s{t+1}, s{t+1}, {512*3840}
    s_cmp_lt_u32 s{S_NB}, 15
    s_cselect_b32 s{t+1}, s{t+1}, {BIG}""")
    p.vmem(f"buffer_load_dwordx4 v[{PD}:{PD+3}], v{V_DW1}, s[{SRD_WQKV}:{SRD_WQKV+3}], s{t+1} offen", "touch")
    p.e(f"""s_mul_i32 s{t+1}, s{t}, {20*3456}
    s_add_u32 s{t+1}, s{t+1}, s{t+2}
    s_cmp_lt_u32 s{S_NB}, 14
    s_cselect_b32 s{t+1}, s{t+1}, {BIG}
    v_lshrrev_b32 v1, 4, v0
    v_mul_u32_u24 v1, 3456, v1
    v_and_b32 v4, 15, v0
    v_lshl_add_u32 v1, v4, 4, v1""")
    for i in range(5):
        p.e(f"s_add_u32 s{t+3}, s{t+1}, {i*4*3456}")
        p.vmem(f"buffer_load_dwordx4 v[{PD}:{PD+3}], v1, s[{SRD_W1}:{SRD_W1+3}], s{t+3} offen", "touch")

def p0_pre(p):
    t = T + 8
    p.e(f"""
    v_lshlrev_b32 v{PM+1}, 9, v3
    v_lshl_add_u32 v{PM+1}, v2, 4, v{PM+1}
    s_lshr_b32 s{t}, s2, 2
    s_mul_i32 s{t}, s{t}, 40960
    s_and_b32 s{t+1}, s2, 3
    s_lshl_b32 s{t+1}, s{t+1}, 7
    s_add_u32 s{t}, s{t}, s{t+1}
    s_add_u32 s{t}, s{t}, s{S_M0W}
    s_add_u32 s{t+1}, s{t}, 16384
    s_add_u32 s{t+2}, s{t}, 32768
    s_cmp_lt_u32 s{S_WAVE}, 2
    s_cselect_b32 s{t+2}, s{t+2}, {BIG}
    v_lshlrev_b32 v{PM+6}, 3, v2
    v_add_u32 v{PM+6}, {L_STAT}, v{PM+6}
    s_lshl_b32 s{t+3}, s{S_WAVE}, 6
    v_add_u32 v{PM+7}, s{t+3}, v{PM+6}
    v_lshlrev_b32 v{PM}, 2, v2
    v_cmp_lt_u32 vcc, 7, v0
    v_mov_b32 v1, {BIG}
    v_cndmask_b32 v{PM}, v{PM}, v1, vcc
    s_lshl_b32 s{t+3}, s2, 5
    s_add_u32 s{t+3}, s{t+3}, {CV}
    s_cmp_eq_u32 s{S_WAVE}, 0
    s_cselect_b32 s{t+3}, s{t+3}, {BIG}
    """)

def p0_compute(p, hooks):
    t = T + 8
    vst, vs, vq, a, b = PM + 1, PM + 2, PM + 3, PM + 4, PM + 5
    R = PM + 8
    for i in range(3):
        p.wait_vm(f"x{i}")
        for f in hooks.get(i, []): f(p)
        for d in range(4):
            src = PR + 4 * i + d; e = PE + 8 * i + 2 * d
            p.e(f"v_lshlrev_b32 v{e}, 16, v{src}\nv_and_b32 v{e+1}, 0xffff0000, v{src}")
        for e in range(PE + 8 * i, PE + 8 + 8 * i):
            if e == PE: p.e(f"v_mov_b32 v{vs}, v{e}\nv_mul_f32 v{vq}, v{e}, v{e}")
            else: p.e(f"v_add_f32 v{vs}, v{vs}, v{e}\nv_fmac_f32 v{vq}, v{e}, v{e}")
    p.e(f"v_add_f32_dpp v{vs}, v{vs}, v{vs} row_ror:8 row_mask:0xf bank_mask:0xf")
    p.e(f"v_add_f32_dpp v{vq}, v{vq}, v{vq} row_ror:8 row_mask:0xf bank_mask:0xf")
    for sw in ("v_permlane16_swap_b32", "v_permlane32_swap_b32"):
        p.e(f"v_mov_b32 v{a}, v{vs}\nv_mov_b32 v{b}, v{vq}\n{sw} v{a}, v{vs}\n{sw} v{b}, v{vq}")
        p.e(f"v_add_f32 v{vs}, v{a}, v{vs}\nv_add_f32 v{vq}, v{b}, v{vq}")
    p.lds(f"ds_write_b64 v{PM+7}, v[{vs}:{vq}]", "stw")
    for f in hooks.get(3, []): f(p)
    stamp(p, 25)
    p.wait_lg("stw")
    p.e("s_barrier")
    for i in range(4):
        p.lds(f"ds_read_b64 v[{R+2*i}:{R+1+2*i}], v{PM+6} offset:{64*i}", "st")
    p.wait_lg("st")
    p.e(f"""
    v_add_f32 v{R}, v{R}, v{R+2}
    v_add_f32 v{R+1}, v{R+1}, v{R+3}
    v_add_f32 v{R+4}, v{R+4}, v{R+6}
    v_add_f32 v{R+5}, v{R+5}, v{R+7}
    v_add_f32 v{R}, v{R}, v{R+4}
    v_add_f32 v{R+1}, v{R+1}, v{R+5}
    v_mul_f32 v{R}, {f2u(1/640):#x}, v{R}
    v_mul_f32 v{R+1}, {f2u(1/640):#x}, v{R+1}
    v_fma_f32 v{R+1}, -v{R}, v{R}, v{R+1}
    v_max_f32 v{R+1}, 0, v{R+1}
    """)
    rs, ms, c = R + 2, R + 3, R + 4
    rbf16(p, rs, R + 1)
    p.e(f"v_add_f32 v{rs}, {f2u(1e-5):#x}, v{rs}")
    rbf16(p, rs, rs)
    p.e(f"v_sqrt_f32 v{rs}, v{rs}")
    rbf16(p, rs, rs)
    p.e(f"v_rcp_f32 v{rs}, v{rs}\ns_nop 0\nv_mul_f32 v{ms}, v{R}, v{rs}")
    for i in range(3):
        for e in range(PE + 8 * i, PE + 8 + 8 * i):
            p.e(f"v_fma_f32 v{e}, v{e}, v{rs}, -v{ms}")
        for d in range(4):
            e = PE + 8 * i + 2 * d
            p.e(f"v_cvt_pk_bf16_f32 v{PR+4*i+d}, v{e}, v{e+1}")
        p.vmem(f"buffer_store_dwordx4 v[{PR+4*i}:{PR+3+4*i}], v{vst}, {WS}, s{t+i} offen {SC}", "xnst")
    p.e(f"v_mul_f32 v{c}, v{R+1}, v{rs}\nv_mul_f32 v{c}, v{c}, v{rs}")
    rbf16(p, c, c)
    p.e(f"v_add_f32 v{c}, {f2u(1e-5):#x}, v{c}")
    rbf16(p, c, c)
    p.e(f"v_sqrt_f32 v{c}, v{c}")
    rbf16(p, c, c)
    p.e(f"v_rcp_f32 v{c}, v{c}")
    p.vmem(f"buffer_store_dword v{c}, v{PM}, {WS}, s{t+3} offen {SC}", "xnst")

def tr_issue(p, qs=range(4)):
    t = T
    for q in qs:
        p.e(f"s_add_u32 m0, s{S_M0W}, {L_TR + q*1024}\ns_add_u32 s{t+1}, s{S_TRO}, {q*8*1280}")
        p.vmem(f"buffer_load_dwordx4 v64, s[{SRD_WT}:{SRD_WT+3}], s{t+1} offen lds", "trd")

def tr_finish():
    F = []
    t = T + 2
    F.append((0, lambda p: p.wait_vm("trd")))
    for ct in range(4):
        b = V_TRF + 4 * ct
        F.append((1, lambda p, b=b, ct=ct: p.lds(f"ds_read_b64_tr_b16 v[{b}:{b+1}], v{V_TRA} offset:{ct*32}", f"trr{ct}")))
        F.append((1, lambda p, b=b, ct=ct: p.lds(f"ds_read_b64_tr_b16 v[{b+2}:{b+3}], v{V_TRA} offset:{ct*32+512}", f"trr{ct}")))
    for ct in range(4):
        b = V_TRF + 4 * ct
        lines(F, f"""s_lshl_b32 s{t}, s{S_TRC}, 2
        s_add_u32 s{t}, s{t}, {ct}
        s_mul_i32 s{t+1}, s{t}, 13108
        s_lshr_b32 s{t+1}, s{t+1}, 16
        s_mul_i32 s{t+2}, s{t+1}, 365
        s_add_u32 s{t}, s{t}, s{t+2}
        s_mul_i32 s{t+1}, s{S_TRS}, 5
        s_add_u32 s{t+1}, s{t+1}, s{t}
        s_lshl_b32 s{t+1}, s{t+1}, 10
        s_add_u32 s{t+1}, s{t+1}, {W2T}""")
        F.append((2, lambda p: p.e(f"s_cmp_lt_u32 s{S_TRU}, 740\ns_cselect_b32 s{t+1}, s{t+1}, {BIG}")))
        def st(p, b=b, ct=ct):
            p.wait_lg(f"trr{ct}")
            p.vmem(f"buffer_store_dwordx4 v[{b}:{b+3}], v{V_LIN}, {WS}, s{t+1} offen {SC}", "trst")
        F.append((1, st))
    return F

S_WSL, S_ROT2 = 55, 97
def p1_dma(p, sl, qs=range(4)):
    slot = sl % 8
    for q in qs:
        if sl < 10:
            if q == 0:
                rot_idx(p, S_WSL, sl, S_ROT)
                p.e(f"s_mul_i32 s{S_WSL}, s{S_WSL}, {64*3840}\ns_add_u32 s{S_WSL}, s{S_WSL}, s{S_W1B}")
            p.e(f"s_add_u32 m0, s{S_M0W}, {slot*16384 + q*1024}\ns_add_u32 s{S_WOFF}, s{S_WSL}, {4*q*3840}")
            p.vmem(f"buffer_load_dwordx4 v{V_DW1}, s[{SRD_WQKV}:{SRD_WQKV+3}], s{S_WOFF} offen lds", f"W{sl}")
        else:
            j = (sl - 10) % 5
            b = S_P0B if sl < 15 else S_P1B
            if q == 0:
                rot_idx(p, S_WSL, 2 * j, S_ROT2)
                p.e(f"s_mul_i32 s{S_WSL}, s{S_WSL}, {64*3456}\ns_add_u32 s{S_WSL}, s{S_WSL}, s{b}")
            p.e(f"s_add_u32 m0, s{S_M0W}, {slot*16384 + q*1024}\ns_add_u32 s{S_WOFF}, s{S_WSL}, {8*q*3456}")
            p.vmem(f"buffer_load_dwordx4 v{V_DW2}, s[{SRD_W1}:{SRD_W1+3}], s{S_WOFF} offen lds", f"W{sl}")

def p1_xload(p, s):
    if s % 4 == 0:
        rot_idx(p, S_XO, s // 4, S_ROT)
        p.e(f"s_lshl_b32 s{S_XO}, s{S_XO}, 12\ns_add_u32 s{S_XO}, s{S_XO}, s{S_XB}")
    p.vmem(f"buffer_load_dwordx4 a[{A_X+4*s}:{A_X+4*s+3}], v{V_LIN}, {WS}, s{S_XO} offen offset:{(s%4)*1024} {SC}", f"X{s}")

def wf(i): return WFPOOL[i % len(WFPOOL)]
def p1_reads(i):
    b = wf(i)
    if i < 160:
        s, tile = divmod(i, 4); sl = s // 4
        off = (sl % 8) * 16384 + (s % 4) * 4096 + tile * 256
        d2 = 1024; lo, hi = V_T1, V_T1H
    else:
        tau, s = divmod(i - 160, 40); sl = 10 + 5 * (tau // 2) + s // 8
        off = (sl % 8) * 16384 + (s % 8) * 2048 + (tau % 2) * 256
        d2 = 512; lo, hi = V_T2, V_T2H
    base = lo
    if off >= 65536:
        base = hi; off -= 65536
    return [f"ds_read_b64_tr_b16 v[{b}:{b+1}], v{base} offset:{off}",
            f"ds_read_b64_tr_b16 v[{b+2}:{b+3}], v{base} offset:{off+d2}"]
def p1_mfma(i, vtype):
    b = wf(i)
    if i < 160:
        s, tile = divmod(i, 4); acc = V_ACC1 + 16 * tile
    else:
        tau, s = divmod(i - 160, 40); acc = V_ACC2 + 16 * (tau % 2); vtype = False
    x = f"a[{A_X+4*s}:{A_X+4*s+3}]"; w = f"v[{b}:{b+3}]"
    c = "0" if s == 0 else f"v[{acc}:{acc+15}]"
    a_, b_ = (x, w) if vtype else (w, x)
    return f"v_mfma_f32_32x32x16_bf16 v[{acc}:{acc+15}], {a_}, {b_}, {c}"

def qkv_epilogue():
    F = []
    for tile in range(4):
        acc = V_ACC1 + 16 * tile
        for u in range(2):
            tb = V_TMP + 4 * ((2 * tile + u) % 2)
            for e in range(4):
                r = acc + 8 * u + 2 * e
                lines(F, f"v_mul_f32 v{r}, s{S_SCALE}, v{r}\nv_mul_f32 v{r+1}, s{S_SCALE}, v{r+1}\nv_cvt_pk_bf16_f32 v{tb+e}, v{r}, v{r+1}")
            F.append((1, lambda p, tb=tb, k=2*tile+u: p.vmem(f"buffer_store_dwordx4 v[{tb}:{tb+3}], v{V_EOFF}, {WS}, s{S_E+k} offen {SC}", "qkvst")))
    return F

def gelu_epilogue(tau):
    F = []
    acc = V_ACC2 + 16 * (tau % 2)
    for q in range(4):
        off = (32 * tau + 16 * (q >> 1) + 4 * (q & 1)) * 4
        F.append((1, lambda p, q=q, off=off: p.lds(f"ds_read_b128 v[{V_BIAS+4*q}:{V_BIAS+4*q+3}], v{V_BADDR} offset:{off}", f"bias{tau}")))
    for u in range(2):
        pk = V_TMP + 8 + 4 * u
        for e in range(4):
            r0 = acc + 8 * u + 2 * e; b0 = V_BIAS + 8 * u + 2 * e
            t0, t1 = V_TMP + 16, V_TMP + 17
            if u == 0 and e == 0:
                F.append((3, lambda p: None))
                F.append((0, lambda p: p.wait_lg(f"bias{tau}")))
            seq = [
                f"v_fma_f32 v{r0}, v{r0}, v{V_C}, v{b0}", f"v_fma_f32 v{r0+1}, v{r0+1}, v{V_C}, v{b0+1}",
                f"v_mul_f32 v{t0}, v{r0}, v{r0}", f"v_mul_f32 v{t1}, v{r0+1}, v{r0+1}",
                f"v_fma_f32 v{t0}, v{t0}, v{V_K1}, v{V_K2}", f"v_fma_f32 v{t1}, v{t1}, v{V_K1}, v{V_K2}",
                f"v_mul_f32 v{t0}, v{t0}, v{r0}", f"v_mul_f32 v{t1}, v{t1}, v{r0+1}",
                f"v_exp_f32 v{t0}, v{t0}", f"v_exp_f32 v{t1}, v{t1}",
                f"v_add_f32 v{t0}, 1.0, v{t0}", f"v_add_f32 v{t1}, 1.0, v{t1}",
                f"v_rcp_f32 v{t0}, v{t0}", f"v_rcp_f32 v{t1}, v{t1}",
                f"v_mul_f32 v{t0}, v{t0}, v{r0}", f"v_mul_f32 v{t1}, v{t1}, v{r0+1}",
                f"v_cvt_pk_bf16_f32 v{pk+e}, v{t0}, v{t1}"]
            for s in seq:
                F.append((2 if s.split()[0] in TRANS else 1, lambda p, s=s: p.e(s)))
        sb = S_H0 if tau < 2 else S_H1
        F.append((1, lambda p, pk=pk, sb=sb, off=(tau % 2) * 2048 + u * 1024:
                  p.vmem(f"buffer_store_dwordx4 v[{pk}:{pk+3}], v{V_LIN}, {WS}, s{sb} offen offset:{off} {SC}", "hst")))
    return F

def run_stream(p, lo, hi, total, mfma, reads, pre_mfma, pre_read, post, fillers, la, grp):
    cur, ci, budget, per = [], 0, 0.0, 0.0
    for i in range(lo, hi):
        if i in fillers:
            while ci < len(cur):
                cur[ci][1](p); ci += 1
            cur, span = fillers[i]
            ci = 0; budget = 0.0
            per = sum(w for w, _ in cur) / span
        if i % grp == 0: p.wait_lg(("wf", i + grp - 1))
        for f in pre_mfma.get(i, []): f(p)
        p.e(mfma(i))
        j = i + la
        if j < total:
            for f in pre_read.get(j, []): f(p)
            for r in reads(j): p.lds(r, ("wf", j))
        for f in post.get(i, []): f(p)
        budget += per
        while ci < len(cur) and (budget >= cur[ci][0] - 1e-9):
            budget -= cur[ci][0]
            cur[ci][1](p); ci += 1
    while ci < len(cur):
        cur[ci][1](p); ci += 1

NBA = 64
def nbl(): return O("nbl", 24)
def bslot(n):
    if n < 24: return 160 + 4 * n
    if n < 64: return 4 * (n - 24)
    return bslot(n - NBA - nbl())
def b_is_lds(n): return NBA <= n < NBA + nbl()
def b_lds_off(n):
    m = n - NBA
    return (0, m * 1024) if m < 16 else (1, (m - 16) * 1024)
def b_step_addr(p, i):
    if i < 14:
        p.e(f"s_mul_i32 s{S_BCUR}, s{S_BI}, 5120\ns_add_u32 s{S_BCUR}, s{S_BCUR}, s{S_BH}")
        if i == 13:
            p.e(f"s_cmp_lt_u32 s{S_WAVE}, 2\ns_cselect_b32 s{S_BCUR}, s{S_BCUR}, {BIG}\ns_mov_b32 s{S_BI}, s{S_ROTO}")
        else:
            p.e(f"s_add_u32 s{S_BI}, s{S_BI}, 1\ns_cmp_eq_u32 s{S_BI}, s{S_NH}\ns_cselect_b32 s{S_BI}, 0, s{S_BI}")
    else:
        p.e(f"s_mul_i32 s{S_BCUR}, s{S_BI}, 5120\ns_add_u32 s{S_BCUR}, s{S_BCUR}, s{S_BO}")
        if i < 18: p.e(f"s_add_u32 s{S_BI}, s{S_BI}, 1\ns_cmp_eq_u32 s{S_BI}, 5\ns_cselect_b32 s{S_BI}, 0, s{S_BI}")
def b_load(p, n):
    i, ct = divmod(n, 5)
    if ct == 0: b_step_addr(p, i)
    if ct == 4: p.e(f"s_add_u32 s{S_BCUR}, s{S_BCUR}, 4096")
    off = (ct % 4) * 1024
    if b_is_lds(n):
        reg, lo = b_lds_off(n)
        if reg == 0: p.e(f"s_lshl_b32 s{S_BL}, s{S_WAVE}, 14\ns_add_u32 m0, s{S_BL}, {L_BA + lo}")
        else: p.e(f"s_lshl_b32 s{S_BL}, s{S_WAVE}, 13\ns_add_u32 m0, s{S_BL}, {L_BB + lo}")
        p.e(f"s_add_u32 s{S_BCUR2}, s{S_BCUR}, {off}")
        p.vmem(f"buffer_load_dwordx4 v{V_LIN}, {WS}, s{S_BCUR2} offen {SC} lds", ("B", n))
    else:
        a = bslot(n)
        p.vmem(f"buffer_load_dwordx4 a[{a}:{a+3}], v{V_LIN}, {WS}, s{S_BCUR} offen offset:{off} {SC}", ("B", n))

def attn_loads():
    F = []
    t = T
    for k in range(4):
        def f(p, k=k):
            p.e(f"s_lshl_b32 s{t}, s{S_WAVE}, 13\ns_add_u32 m0, s{t}, {L_K + k*2048}\ns_add_u32 s{t+1}, s{S_KB}, {k*81920}")
            p.vmem(f"buffer_load_dwordx4 v{V_LIN}, {WS}, s{t+1} offen {SC} lds", "KV")
        F.append(f)
        F.append(lambda p: p.vmem(f"buffer_load_dwordx4 v{V_LIN}, {WS}, s{t+1} offen offset:1024 {SC} lds", "KV"))
    for i in range(5):
        def f(p, i=i):
            if i == 0: p.e(f"s_mul_i32 s{t}, s{S_WAVE}, 5120\ns_add_u32 m0, s{t}, {L_V}\ns_nop 0")
            if i == 4: p.e(f"s_add_u32 m0, s{t}, {L_V + 4096}\ns_nop 0")
            p.vmem(f"buffer_load_dwordx4 v{VDV+i}, {WS}, s{S_VB} offen offset:{(i%4)*1024} {SC} lds", "KV")
        F.append(f)
    for qi in range(2):
        b = VQ + 8 * qi
        def f(p, b=b, qi=qi):
            if qi == 1: p.e(f"s_add_u32 s{S_QB0}, s{S_QB0}, 81920")
            p.vmem(f"buffer_load_dwordx4 v[{b}:{b+3}], v{VOM}, {WS}, s{S_QB0} offen {SC}", "Q")
        F.append(f)
        F.append(lambda p, b=b: p.vmem(f"buffer_load_dwordx2 v[{b+4}:{b+5}], v{VOT}, {WS}, s{S_QB0} offen {SC}", "Q"))
    return F

def attn_late_setup():
    pre = f"v_mov_b32 v{VKB+7}, 0x3f80\nv_mov_b32 v{VKB+15}, 0x3f80\nv_mov_b32 v{VMX}, 0xff7fffff\nv_mov_b32 v{VMX+1}, 0xff7fffff\n"
    for kt in range(8):
        pre += f"s_cmp_gt_u32 s{S_KMIN}, {kt}\ns_cselect_b32 s{S_AM[kt]}, 0x3f80f149, 1.0\n"
    L = ["v_and_b32 v2, 31, v0", "v_lshrrev_b32 v3, 5, v0", "v_lshlrev_b32 v3, 2, v3", "v_sub_u32 v4, v2, v3"]
    L += [f"v_cmp_le_i32 s[{S_TRIP[r]}:{S_TRIP[r]+1}], {8*(r>>2) + (r&3)}, v4" for r in range(16)]
    L += ["v_mov_b32 v5, 0xffff", "v_mov_b32 v1, 0xffff0000"]
    for e in range(8):
        a, b = S_TRIP[2*e], S_TRIP[2*e+1]
        L += [f"v_cndmask_b32 v2, 0, v5, s[{a}:{a+1}]", f"v_cndmask_b32 v3, 0, v1, s[{b}:{b+1}]", f"v_or_b32 v{VML+e}, v2, v3"]
    return pre, L

def attn_main(p, extraA, mid, extraB):
    t = T
    order = [2, 3, 4, 5, 6, 7, 0, 8, 1, 9]
    kbuf = {kt: VKB + 8 * (n % 2) for n, kt in enumerate(order)}
    vbuf = {kt: VVB + 8 * (n % 3) for n, kt in enumerate(order)}
    def kread(kt, ps):
        b = kbuf[kt]
        p.lds(f"ds_read_b128 v[{b}:{b+3}], v{VKA} offset:{kt*2048}", ("K", kt, ps))
        p.lds(f"ds_read_b64 v[{b+4}:{b+5}], v{VKT} offset:{kt*2048}", ("K", kt, ps))
        p.e(f"v_mov_b32 v{b+6}, " + (f"s{S_AM[kt]}" if kt < 8 else "1.0"))
    def vread(kt):
        b = vbuf[kt]
        p.e(f"s_mov_b64 exec, s[{S_VX}:{S_VX+1}]")
        p.lds(f"ds_read_b128 v[{b}:{b+3}], v{VVA} offset:{kt*1280}", ("V", kt))
        p.lds(f"ds_read_b128 v[{b+4}:{b+7}], v{VVA} offset:{kt*1280+640}", ("V", kt))
        p.e("s_mov_b64 exec, -1")
    units = [("f", q, kt) for kt in range(2, 8) for q in range(2)] + [("m", 0, 0, 8), ("f", 1, 8), ("f", 0, 1), ("m", 1, 1, 9)]
    NU = len(units)
    qk = [[(u[1], u[2]), (u[1], u[3])] if u[0] == "m" else [(u[1], u[2])] for u in units]
    sb = []; n = 0
    for ops in qk:
        sb.append([VS + 16 * ((n + i) % 3) for i in range(len(ops))]); n += len(ops)
    for a, b in zip(sb[:-1], sb[1:]): assert not set(a) & set(b)
    def qk_mfmas(ui, ps):
        L = []
        for (q, kt), s in zip(qk[ui], sb[ui]):
            b = kbuf[kt]; qb_ = VQ + 8 * q
            def f1(p, kt=kt, s=s, b=b, qb_=qb_):
                p.wait_lg(("K", kt, ps))
                p.e(f"v_mfma_f32_32x32x16_bf16 v[{s}:{s+15}], v[{b}:{b+3}], v[{qb_}:{qb_+3}], 0")
            def f2(p, s=s, b=b, qb_=qb_):
                p.e(f"v_mfma_f32_32x32x16_bf16 v[{s}:{s+15}], v[{b+4}:{b+7}], v[{qb_+4}:{qb_+7}], v[{s}:{s+15}]")
            L += [f1, f2]
        return L
    last_use = {}
    for ui, ops in enumerate(qk):
        for (q, kt) in ops: last_use[kt] = ui
    def kreads_after(ui, ps):
        return [(lambda p, kt=kt: kread(kt, ps)) for n, kt in enumerate(order) if n >= 2 and last_use[order[n - 2]] == ui]
    def merge(ui):
        f, l = sb[ui]
        return [f"v_cndmask_b32 v{l+r}, v{f+r}, v{l+r}, s[{S_TRIP[r]}:{S_TRIP[r]+1}]" for r in range(16)]
    def interleave(valu, mf, tail):
        tot = sum(w for w, _ in valu); acc = 0.0; k = 0
        nm = len(mf)
        items = list(mf)
        for w, f in valu:
            while k < nm and acc >= tot * k / max(1, nm) - 1e-9:
                items[k](p); k += 1
            if k >= nm and tail: tail.pop(0)(p)
            f(p); acc += w
        while k < nm:
            items[k](p); k += 1
        while tail: tail.pop(0)(p)
    E = lambda s: (2 if s.split()[0] in TRANS else 1, lambda p, s=s: p.e(s))
    kread(order[0], "A"); kread(order[1], "A")
    for f in qk_mfmas(0, "A"): f(p)
    for f in kreads_after(0, "A"): f(p)
    for ui, u in enumerate(units):
        valu = []
        s = sb[ui][-1]
        if u[0] == "m": valu += [E(x) for x in merge(ui)]
        m = VMX + u[1]
        valu += [E(f"v_max3_f32 v{m}, v{s+2*e}, v{s+2*e+1}, v{m}") for e in range(8)]
        mf = qk_mfmas(ui + 1, "A") if ui + 1 < NU else []
        ex = list(extraA.get(ui, []))
        for k, f in enumerate(mf):
            f(p)
            if k < len(mf) - 1:
                for _ in range(O("aex", 4)):
                    if ex: ex.pop(0)(p)
        for f in (kreads_after(ui + 1, "A") if ui + 1 < NU else []): f(p)
        if not mf: p.e("s_nop 7")
        for w, f in valu: f(p)
        for f in ex: f(p)
    stamp(p, 9)
    kread(order[0], "B"); kread(order[1], "B")
    vread(order[0]); vread(order[1])
    mid(p)
    for q in range(2):
        m = VMX + q; a = VMX + 2; qt = VQ + 8 * q + 4
        p.e(f"""
        v_mov_b32 v{a}, v{m}
        v_permlane32_swap_b32 v{a}, v{m}
        v_max_f32 v{m}, v{a}, v{m}
        v_mul_f32 v{m}, -v{m}, v{VONE}
        v_cvt_pk_bf16_f32 v{qt+2}, v{VONE}, v{m}
        v_and_b32 v{a}, 0xffff0000, v{qt+2}
        v_sub_f32 v{a}, v{m}, v{a}
        v_cvt_pk_bf16_f32 v{qt+3}, v{a}, 0
        """)
    vlast = {}; pv = []
    for ui, u in enumerate(units):
        kts = [u[2], u[3]] if u[0] == "m" else [u[2]]
        pv.append(kts)
        for kt in kts: vlast[kt] = ui
    first_pv = {0: True, 1: True}
    def pv_mfmas(ui):
        u = units[ui]; q = u[1]; o = VO + 16 * q
        L = []
        srcs = [sb[ui][0], sb[ui][0] + 8] if u[0] == "m" else [VP + 8 * (ui % 2)]
        for kt, pb in zip(pv[ui], srcs):
            for g in range(2):
                c = "0" if first_pv[q] else f"v[{o}:{o+15}]"
                first_pv[q] = False
                vb = vbuf[kt] + 4 * g
                def f(p, kt=kt, vb=vb, pb=pb + 4 * g, c=c, o=o):
                    p.wait_lg(("V", kt))
                    p.e(f"v_mfma_f32_32x32x16_bf16 v[{o}:{o+15}], v[{vb}:{vb+3}], v[{pb}:{pb+3}], {c}")
                L.append(f)
        return L
    def vreads_after(ui):
        return [(lambda p, kt=kt: vread(kt)) for n, kt in enumerate(order) if n >= 3 and vlast[order[n - 3]] == ui]
    for f in qk_mfmas(0, "B"): f(p)
    for f in kreads_after(0, "B"): f(p)
    vread(order[2])
    for ui, u in enumerate(units):
        s = sb[ui][-1]; pb = VP + 8 * (ui % 2)
        valu = [E(x) for x in merge(ui)] if u[0] == "m" else []
        for e in range(8):
            valu += [E(f"v_exp_f32 v{s+2*e}, v{s+2*e}"), E(f"v_exp_f32 v{s+2*e+1}, v{s+2*e+1}")]
            if e > 0: valu.append(E(f"v_cvt_pk_bf16_f32 v{pb+e-1}, v{s+2*e-2}, v{s+2*e-1}"))
        valu.append(E(f"v_cvt_pk_bf16_f32 v{pb+7}, v{s+14}, v{s+15}"))
        if u[0] == "m":
            ps_ = sb[ui][0]
            for e in range(8):
                valu.append(E(f"v_bfi_b32 v{ps_+e}, v{VML+e}, 0, v{pb+e}"))
                valu.append(E(f"v_and_b32 v{ps_+8+e}, v{VML+e}, v{pb+e}"))
        mf = []; tail = []
        if ui > 0: mf += pv_mfmas(ui - 1); tail += vreads_after(ui - 1)
        if ui + 1 < NU: mf += qk_mfmas(ui + 1, "B"); tail += kreads_after(ui + 1, "B")
        ex = list(extraB.get(ui, []))
        mf2 = []
        for k, f in enumerate(mf):
            def g(p, f=f, last=(k == len(mf) - 1)):
                f(p)
                if ex and not last: ex.pop(0)(p)
            mf2.append(g)
        interleave(valu, mf2, tail)
        for f in ex: f(p)
    for f in pv_mfmas(NU - 1): f(p)
    stamp(p, 10)
    p.e(f"s_add_u32 s{t+1}, s{S_OB}, 40960")
    for q in range(2):
        o = VO + 16 * q; a, b = VMX + 2, VMX + 3
        p.e(f"v_mov_b32 v{a}, v{o+8}\nv_mov_b32 v{b}, v{o+8}\nv_permlane32_swap_b32 v{a}, v{b}\nv_rcp_f32 v{b}, v{b}")
        for r in range(12): p.e(f"v_mul_f32 v{o+r}, v{o+r}, v{b}")
        pk = VP + 8 * q
        for e in range(6): p.e(f"v_cvt_pk_bf16_f32 v{pk+e}, v{o+2*e}, v{o+2*e+1}")
        so = S_OB if q == 0 else t + 1
        p.vmem(f"buffer_store_dwordx4 v[{pk}:{pk+3}], v{VOM}, {WS}, s{so} offen {SC}", "ost")
        p.vmem(f"buffer_store_dwordx2 v[{pk+4}:{pk+5}], v{VOT}, {WS}, s{so} offen {SC}", "ost")

NS = 19
def ALA(): return O("ala", 3)
def xres_dma():
    F = []
    t = T
    for i in range(3):
        def f(p, i=i):
            p.e(f"""v_add_u32 v1, {64*i}, v0
            v_mul_u32_u24 v2, 6554, v1
            v_lshrrev_b32 v2, 16, v2
            v_mul_u32_u24 v3, 1120, v2
            v_lshl_add_u32 v1, v1, 4, v3""")
            if i == 0:
                p.e(f"""s_lshl_b32 s{t+2}, s{S_MB4}, 6
                s_lshl_b32 s{t+3}, s{S_WAVE}, 4
                s_add_u32 s{t+2}, s{t+2}, s{t+3}
                s_mul_i32 s{t+2}, s{t+2}, 1280
                s_add_u32 s{t+2}, s{t+2}, s{S_COL}
                s_mul_i32 s{t+3}, s{S_WAVE}, 2560
                s_cmp_lt_u32 s{S_WAVE}, 3
                s_cselect_b32 s{t+3}, s{t+3}, {159744 - 131072}
                s_add_u32 s{t+3}, s{t+3}, 131072""")
            p.e(f"s_add_u32 m0, s{t+3}, {1024*i}")
            if i == 2: p.e("s_mov_b32 exec_hi, 0")
            else: p.e("s_nop 0")
            p.vmem(f"buffer_load_dwordx4 v1, s[{SRD_X}:{SRD_X+3}], s{t+2} offen lds", "xres")
            if i == 2:
                p.e(f"s_mov_b32 exec_hi, -1\nv_and_b32 v1, 15, v0\nv_mul_u32_u24 v1, 160, v1\nv_add_u32 v1, v1, v{V_RB}\nv_add_u32 v{V_XD}, s{t+3}, v1")
        F.append(f)
    return F

def a_load(p, i, k):
    if k == 0:
        base = S_AH if i < 14 else S_AO
        p.e(f"s_lshl_b32 s{S_ACUR}, s{S_AI}, {O('ash', 11)}\ns_add_u32 s{S_ACUR}, s{S_ACUR}, s{base}")
        if i == 13:
            p.e(f"s_cmp_lt_u32 s{S_WAVE}, 2\ns_cselect_b32 s{S_ACUR}, s{S_ACUR}, {BIG}\ns_mov_b32 s{S_AI}, s{S_ROTO}")
        elif i < 13:
            p.e(f"s_add_u32 s{S_AI}, s{S_AI}, 1\ns_cmp_eq_u32 s{S_AI}, s{S_NH}\ns_cselect_b32 s{S_AI}, 0, s{S_AI}")
        elif i < 18:
            p.e(f"s_add_u32 s{S_AI}, s{S_AI}, 1\ns_cmp_eq_u32 s{S_AI}, 5\ns_cselect_b32 s{S_AI}, 0, s{S_AI}")
    b = APOOL[(4 * i + k) % (4 * (ALA() + 1))]
    va = (VAH if i < 14 else VAO) + k
    p.vmem(f"buffer_load_dwordx4 v[{b}:{b+3}], v{va}, {WS}, s{S_ACUR} offen {SC}", ("A", i))

def phase4(p, npre):
    t = T
    la = ALA()
    extra, pre = {}, {}
    def res(p, ct):
        p.wait_vm("xres")
        p.lds(f"ds_read_b64 v[{VXR+2*ct}:{VXR+2*ct+1}], v{V_XD} offset:{32*ct}", "xr")
        p.vmem(f"buffer_load_dwordx2 v[{VBR+2*ct}:{VBR+2*ct+1}], v{V_RB}, s[{SRD_B2}:{SRD_B2+3}], s{S_COL} offen offset:{32*ct}", "res")
    for ct in range(5): extra.setdefault(ct // 3, []).append(lambda p, ct=ct: res(p, ct))
    nb = NBA + nbl()
    for i in range(1, 12):
        for k in range(3):
            if nb < 95 and (nb - NBA - nbl()) // 5 < i:
                extra.setdefault(i, []).append(lambda p, n=nb: b_load(p, n)); nb += 1
    assert nb == 95, nb
    def oflag(p):
        p.wait_vm("ost"); p.wait_lg("xr"); p.e("s_barrier"); flag_store(p, F_O, S_FO)
    pre[O("oflag", 3)] = [oflag]
    extra.setdefault(O("opoll", 9), []).append(lambda p: poll_issue(p, F_O, V_OPO, 6, "opoll"))
    pre.setdefault(14 - la, []).append(lambda p: poll_check(p, V_OPO, 6, "opoll"))
    p.e(f"s_lshl_b32 s{t}, s{S_WAVE}, 14\nv_add_u32 v1, s{t}, v{V_LIN}\ns_lshl_b32 s{t}, s{S_WAVE}, 13\ns_add_u32 s{t}, s{t}, {L_BB}\nv_add_u32 v2, s{t}, v{V_LIN}")
    lb = [n for n in range(95) if b_is_lds(n)]
    lbuf = {n: BLPOOL[k % 8] for k, n in enumerate(lb)}
    def lread(p, n):
        reg, lo = b_lds_off(n); b = lbuf[n]
        p.wait_vm(("B", n))
        p.lds(f"ds_read_b128 v[{b}:{b+3}], v{1+reg} offset:{lo}", ("BL", n))
    issued = set()
    stamp(p, 1, grp="p4")
    for i in range(npre, la):
        for k in range(4): a_load(p, i, k)
    for i in range(NS):
        for f in pre.get(i, []): f(p)
        todo = [(lambda p, k=k, i=i: a_load(p, i + la, k)) for k in range(4)] if i + la < NS else []
        todo += extra.get(i, [])
        p.wait_vm(("A", i))
        p.wait_vm(("B", 5 * i + 4))
        n = 0
        for ct in range(5):
            fn = 5 * i + ct
            for m in lb:
                if m not in issued and m <= fn + 3:
                    lread(p, m); issued.add(m)
            if b_is_lds(fn):
                p.wait_lg(("BL", fn)); bs = f"v[{lbuf[fn]}:{lbuf[fn]+3}]"
            else:
                bs = f"a[{bslot(fn)}:{bslot(fn)+3}]"
            for k in range(4):
                ab = APOOL[(4 * i + k) % (4 * (la + 1))]
                a = ACCQ[5 * k + ct]
                c = "0" if i == 0 else f"v[{a}:{a+3}]"
                p.e(f"v_mfma_f32_16x16x32_bf16 v[{a}:{a+3}], {bs}, v[{ab}:{ab+3}], {c}")
                if n % 2 == 1 and todo: todo.pop(0)(p)
                n += 1
        while todo: todo.pop(0)(p)
        stamp(p, i + 2, grp="p4")
        if i == 13: stamp(p, 12)
        if i in (0, 3, 7): stamp(p, 21 + (i + 1) // 4)
    stamp(p, 13)
    def redaddr(sreg):
        return f"s_mul_i32 s{t+1}, s{sreg}, 15360\ns_cmp_lt_u32 s{sreg}, 2\ns_cselect_b32 s{t+2}, 0, {131072-65536-30720}\ns_add_u32 s{t+1}, s{t+1}, s{t+2}\ns_add_u32 s{t+1}, s{t+1}, 65536\nv_add_u32 v6, s{t+1}, v{V_LIN}"
    for k in range(1, 4):
        p.e(f"s_add_u32 s{t}, s{S_WAVE}, {k}\ns_and_b32 s{t}, s{t}, 3\n" + redaddr(t))
        for ct in range(5):
            a = ACCQ[5 * k + ct]
            p.lds(f"ds_write_b128 v6, v[{a}:{a+3}] offset:{(k-1)*5120 + ct*1024}", "red")
    p.e(redaddr(S_WAVE))
    p.wait_vm("res")
    for ct in range(5):
        a = ACCQ[ct]
        for j in range(2):
            for (src, tmp) in ((VXR, 2), (VBR, 4)):
                p.e(f"v_lshlrev_b32 v{tmp}, 16, v{src+2*ct+j}\nv_and_b32 v{tmp+1}, 0xffff0000, v{src+2*ct+j}")
                p.e(f"v_add_f32 v{a+2*j}, v{a+2*j}, v{tmp}\nv_add_f32 v{a+2*j+1}, v{a+2*j+1}, v{tmp+1}")
    p.wait_lg("red")
    p.e("s_barrier")
    stamp(p, 26)
    for ct in range(5):
        for k in range(3):
            d = VRED + 12 * ct + 4 * k
            p.lds(f"ds_read_b128 v[{d}:{d+3}], v6 offset:{k*5120 + ct*1024}", ("rr", ct))
    for ct in range(5):
        a = ACCQ[ct]
        p.wait_lg(("rr", ct))
        for k in range(3):
            d = VRED + 12 * ct + 4 * k
            for r in range(4): p.e(f"v_add_f32 v{a+r}, v{a+r}, v{d+r}")
        p.e(f"v_cvt_pk_bf16_f32 v{a}, v{a}, v{a+1}\nv_cvt_pk_bf16_f32 v{a+1}, v{a+2}, v{a+3}")
        p.vmem(f"buffer_store_dwordx2 v[{a}:{a+1}], v{V_RX}, s[{SRD_OUT}:{SRD_OUT+3}], s{S_COL} offen offset:{32*ct}", "out")

def build():
    p = Prog()
    t = T
    start0(p)
    p1_dma(p, 0)
    small_loads(p)
    stamp(p, 1)
    setup_early(p)
    p0_pre(p)
    q = Prog(); setup_all(q)
    L = [i.text for i in q.ins]
    ncut = L.index("; CUT_P4")
    for x in L[:ncut]: p.e(x)
    L = L[ncut + 1:]
    stamp(p, 29)
    p0_compute(p, {})
    stamp(p, 2)
    pieces = [(sl, k) for sl in range(1, 8) for k in range(4)]
    while len(pieces) > 28 - 4 * O("np1", 3):
        sl, qq = pieces.pop(0); p1_dma(p, sl, [qq])
    p.wait_vm("b1")
    p.e(f"""v_add_u32 v{V_TAG}, 1, v{V_TAG}
    s_mov_b32 s{t}, 0x9e3779b1
    v_mul_lo_u32 v{V_TAG+1}, v{V_TAG}, s{t}
    v_xor_b32 v{V_TAG+1}, 0x5bd1e995, v{V_TAG+1}
    v_lshlrev_b32 v126, 16, v126""")
    p.lds("ds_write_b32 v127, v126", "bw")
    p.wait_vm("xnst")
    p.e("s_barrier")
    flag_store(p, F_XN, 2, 7)
    stamp(p, 3)
    step = len(L) / (len(pieces) + 1); nxt = 0.0
    for k, x in enumerate(L):
        if pieces and k >= nxt and x.split()[0] not in ("s_cselect_b32", "s_cselect_b64", "s_cmov_b32", "s_mov_b32"):
            sl, qq = pieces.pop(0); p1_dma(p, sl, [qq]); nxt += step
        p.e(x)
    for sl, qq in pieces: p1_dma(p, sl, [qq])
    p.e(f"v_and_b32 v1, 15, v0\nv_lshlrev_b32 v1, 7, v1\ns_lshl_b32 s{S_PB}, s{S_MB}, 11\ns_add_u32 s{S_PB}, s{S_PB}, {F_XN}")
    stamp(p, 28)
    poll_issue(p, None, 1, 6, "xpoll")
    poll_check(p, 1, 6, "xpoll")
    stamp(p, 4)
    xla = O("xla", 8)
    for s in range(xla): p1_xload(p, s)
    p.e(f"s_lshl_b32 s{t}, s{S_RT}, 7\ns_add_u32 s{t}, s{t}, {CV}")
    p.vmem(f"buffer_load_dword v{V_C}, v{V_CO}, {WS}, s{t} offen {SC}", "cload")
    p.wait_lg("bw")
    p.e("s_barrier")
    LA, GRP = O("la", 6), O("grp", 2)
    pre_read, post, pre_mfma = {}, {}, {}
    def bar(*tags, after=None):
        def f(p):
            for tg in tags: p.wait_vm(tg)
            p.e("s_barrier")
            if after: after(p)
        return f
    def at_read(i, f): pre_read.setdefault(i, []).append(f)
    def at_post(i, f): post.setdefault(i, []).append(f)
    lastuse = {sl: 16 * sl + 15 for sl in range(10)}
    for j in range(5):
        lastuse[10 + j] = 200 + 8 * j + 7; lastuse[15 + j] = 280 + 8 * j + 7
    firstuse = {sl: 16 * sl for sl in range(10)}
    for j in range(5):
        firstuse[10 + j] = 160 + 8 * j; firstuse[15 + j] = 240 + 8 * j
    bars = {48: [], 96: [], 128: ["W8"], 144: ["W9"], 160: ["W10", "W11", "trst"], 176: ["W12", "W13"], 192: ["W14"], 224: [],
            240: ["W15", "W16", "W17", "qkvst"], 264: ["W18", "W19"]}
    after = {160: lambda p: flag_store(p, F_TR), 240: lambda p: flag_store(p, F_QKV, S_F1)}
    for j, tags in bars.items(): at_read(j, bar(*tags, after=after.get(j)))
    pace = O("pace", 27) / 10.0
    pos = 1.0
    for s_ in range(xla, 40):
        if s_ == O("trx", 20):
            for q in range(4):
                at_post(int(pos), lambda p, q=q: tr_issue(p, [q])); pos += pace
        at_post(int(pos), lambda p, s_=s_: p1_xload(p, s_)); pos += pace
    dpos = {}
    for sl in range(8, 8 + O("nedf", 7)):
        dpos[sl] = []
        for q in range(4):
            dpos[sl].append(int(pos)); pos += pace
    late = {15: (178, 3), 16: (190, 3), 17: (202, 3), 18: (221, 2), 19: (229, 2)}
    for sl, (at, sp) in late.items():
        if sl not in dpos: dpos[sl] = [at + q * sp for q in range(4)]
    for sl, ps in dpos.items():
        assert any(lastuse[sl - 8] <= B - LA - 1 and B - LA <= ps[0] for B in bars), sl
        assert any(f"W{sl}" in tg and B <= firstuse[sl] and ps[3] < B - LA for B, tg in bars.items()), (sl, ps)
        for q in range(4): at_post(ps[q], lambda p, q=q, sl=sl: p1_dma(p, sl, [q]))
    for s in range(40): pre_mfma.setdefault(4 * s, []).append(lambda p, s=s: p.wait_vm(f"X{s}"))
    pre_mfma.setdefault(200, []).append(lambda p: p.wait_vm("cload"))
    tp = O("tpoll", 200)
    at_post(tp, lambda p: poll_issue(p, F_TR, "all", V_ACC1, "trpoll"))
    at_post(tp + 14, lambda p: poll_check(p, "all", V_ACC1, "trpoll"))
    b0, bsp = tp + 15, O("bsp", 3)
    for n in range(24): at_post(b0 + bsp * n, lambda p, n=n: b_load(p, n))
    qp, qc = O("qpoll", 284), O("qchk", 300)
    at_post(qp, lambda p: poll_issue(p, F_QKV, V_QPO, 6, "qpoll"))
    at_post(qc, lambda p: poll_check(p, V_QPO, 6, "qpoll"))
    for k, f in enumerate(attn_loads()): at_post(qc + 1 + k, f)
    for k, i in enumerate((0, 40, 80, 120, 200, 240, 280)):
        pre_mfma.setdefault(i, []).append(lambda p, k=k: stamp(p, 14 + k))
    fill2 = {162: (qkv_epilogue(), 36), 202: (gelu_epilogue(0), 38), 242: (gelu_epilogue(1), 38), 282: (gelu_epilogue(2), 38)}
    for j in range(LA):
        for r in p1_reads(j): p.lds(r, ("wf", j))
    p.e(f"s_cmp_ge_u32 s{S_NB}, 10\ns_cbranch_scc1 L_p1v")
    vm0, lg0 = list(p.vm), list(p.lg)
    run_stream(p, 0, 160, 320, lambda i: p1_mfma(i, False), p1_reads, pre_mfma, pre_read, post, {O("trf", 90): (tr_finish(), 40)}, LA, GRP)
    p.e("s_branch L_p1j")
    p.label("L_p1v")
    p.vm, p.lg = vm0, lg0
    run_stream(p, 0, 160, 320, lambda i: p1_mfma(i, True), p1_reads, pre_mfma, pre_read, post, {O("trf", 90): (tr_finish(), 40)}, LA, GRP)
    p.label("L_p1j")
    stamp(p, 5)
    run_stream(p, 160, 320, 320, lambda i: p1_mfma(i, False), p1_reads, pre_mfma, pre_read, post, fill2, LA, GRP)
    stamp(p, 6)
    pre, late = attn_late_setup()
    p.e(pre)
    bn = 24
    for k, (w, f) in enumerate(gelu_epilogue(3)):
        f(p)
        if k % 18 == 17 and bn < 32:
            b_load(p, bn); bn += 1
    stamp(p, 7)
    p.wait_vm("Q")
    p.e("s_barrier")
    stamp(p, 8)
    extraA, extraB = {}, {}
    for ui in range(16):
        if bn < 48:
            extraA.setdefault(ui, []).append(lambda p, n=bn: b_load(p, n)); bn += 1
    for k, x in enumerate(late): extraA.setdefault(k // 5, []).append(lambda p, x=x: p.e(x))
    def mid(p):
        p.wait_vm("hst"); p.e("s_barrier"); flag_store(p, F_H, S_F1)
    nB = NBA + nbl()
    for ui in range(14):
        for k in range(3):
            if bn < nB:
                extraB.setdefault(ui, []).append(lambda p, n=bn: b_load(p, n)); bn += 1
    assert bn == nB
    hp = O("hpoll", 9)
    extraB.setdefault(hp, []).append(lambda p: poll_issue(p, F_H, V_HPO, 6, "hpoll"))
    extraB.setdefault(hp + 2, []).insert(0, lambda p: poll_check(p, V_HPO, 6, "hpoll"))
    npre = min(3, ALA())
    for i in range(npre):
        for k in range(4): extraB.setdefault(hp + 2 + i, []).append(lambda p, i=i, k=k: a_load(p, i, k))
    for k, f in enumerate(xres_dma()): extraB.setdefault(13 + k, []).append(f)
    attn_main(p, extraA, mid, extraB)
    stamp(p, 11)
    phase4(p, npre)
    stamp(p, 27)
    p.e(f"s_cmp_eq_u32 s2, 0\ns_mov_b32 s{t}, {BIG}\ns_cmov_b32 s{t}, {GEN}")
    p.vmem(f"buffer_store_dword v{V_TAG}, v{V_FL0}, {WS}, s{t} offen {SC}", "gen2")
    stamp_flush(p)
    body = p.finalize()
    print("instructions:", len(p.ins), "pad states:", p.npad, file=sys.stderr)
    return f"""; @launch grid=(256,1,1) block=(256,1,1) lds={LDS_BYTES}
.amdgcn_target "amdgcn-amd-amdhsa--gfx950"
.text
.globl {KN}
.p2align 8
.type {KN},@function
{KN}:
{body}L_end:
  s_endpgm
.section .rodata,"a"
.p2align 6
.amdhsa_kernel {KN}
  .amdhsa_next_free_vgpr 512
  .amdhsa_next_free_sgpr 102
  .amdhsa_accum_offset 256
  .amdhsa_group_segment_fixed_size 0
  .amdhsa_kernarg_size 88
  .amdhsa_user_sgpr_count 2
  .amdhsa_user_sgpr_kernarg_segment_ptr 1
  .amdhsa_system_sgpr_workgroup_id_x 1
.end_amdhsa_kernel
"""

if __name__ == "__main__":
    DIAG = "diag" in sys.argv[2:]
    for a in sys.argv[2:]:
        if "=" in a:
            k, v = a.split("="); OPT[k] = int(v)
    out = sys.argv[1] if len(sys.argv) > 1 else f"cdna_kernels/{NAME}.s"
    open(out, "w").write(build())
```
